```python
import torch

def _softmax(x, axis=-1):
    return torch.softmax(x, dim=axis)
def _gelu(x):
    return torch.nn.functional.gelu(x, approximate="tanh")
def _silu(x):
    return torch.nn.functional.silu(x)
def _sigmoid(x):
    return torch.sigmoid(x)
def _layernorm(x, axis=-1, eps=1e-5):
    m = x.mean(dim=axis, keepdim=True)
    v = x.var(dim=axis, keepdim=True, unbiased=False)
    return (x - m) / torch.sqrt(v + eps)
def _scatter_add(tgt, idx, src, axis=0):
    return tgt.clone().index_add_(axis, idx, src)
def _segment_sum(src, seg, n):
    out = torch.zeros((n,) + src.shape[1:], dtype=src.dtype)
    return out.index_add_(0, seg, src)
def _pad(x, pw):
    flat = tuple(v for pair in reversed(pw) for v in pair)
    return torch.nn.functional.pad(x, flat)

kernel_name = 'gated_mix__spectral_fnet__sliding_local_dilated__prompt'

def setup_inputs():

    _w = (lambda a: (lambda t: t.to(torch.bfloat16) if t.is_floating_point() else t)(torch.as_tensor(a)))
    def _A_setup():
        B, S, D = 1, 2048, 512
        ns = torch.arange(S)[:, None] * torch.arange(S)[None, :]
        nd = torch.arange(D)[:, None] * torch.arange(D)[None, :]
        Ws_re = torch.cos(-2.0 * torch.pi * ns / S).to(float)
        Ws_im = torch.sin(-2.0 * torch.pi * ns / S).to(float)
        Wd_re = torch.cos(-2.0 * torch.pi * nd / D).to(float)
        Wd_im = torch.sin(-2.0 * torch.pi * nd / D).to(float)
        return {
            "x": _w((lambda *s: torch.randn(*s, dtype=torch.bfloat16) * 0.05)(B, S, D)),
            "dft_seq_re": _w(Ws_re),
            "dft_seq_im": _w(Ws_im),
            "dft_hid_re": _w(Wd_re),
            "dft_hid_im": _w(Wd_im),
        }
    _A_in = _A_setup()

    def _B_setup():
        B, S, D = 1, 2048, 512
        return {
            "x": _w((lambda *s: torch.randn(*s, dtype=torch.bfloat16) * 0.05)(B, S, D)),
            "wqkv": _w((lambda *s: torch.randn(*s, dtype=torch.bfloat16) * 1.6)(D, 3 * D)),
            "wo": _w((lambda *s: torch.randn(*s, dtype=torch.bfloat16) * 0.2)(D, D)),
        }
    _B_in = _B_setup()

    return {
        "A_x": _A_in["x"],
        "A_dft_seq_re": _A_in["dft_seq_re"],
        "A_dft_seq_im": _A_in["dft_seq_im"],
        "A_dft_hid_re": _A_in["dft_hid_re"],
        "A_dft_hid_im": _A_in["dft_hid_im"],
        "B_x": _B_in["x"],
        "B_wqkv": _B_in["wqkv"],
        "B_wo": _B_in["wo"],
        "gate_w": _w((lambda *s: torch.randn(*s, dtype=torch.bfloat16) * 0.05)(512) * 16.0),
    }

def reference(A_x, A_dft_seq_re, A_dft_seq_im, A_dft_hid_re, A_dft_hid_im, B_x, B_wqkv, B_wo, gate_w):
    def _A_ref(x, dft_seq_re, dft_seq_im, dft_hid_re, dft_hid_im):
        a = torch.einsum("bsd,ed->bse", x, dft_hid_re)
        b = torch.einsum("bsd,ed->bse", x, dft_hid_im)
        y = torch.einsum("ts,bse->bte", dft_seq_re, a) - torch.einsum("ts,bse->bte", dft_seq_im, b)
        return y

    def _B_ref(x, wqkv, wo):
        B, S, D = x.shape
        H = 32; Dh = D // H
        W, dil = 8, 2
        qkv = (lambda x, *d: x.permute(*d))((x @ wqkv).reshape(B, S, 3, H, Dh), 2, 0, 3, 1, 4)
        q, k, v = qkv[0], qkv[1], qkv[2]
        scale = Dh ** -0.5
        pos = torch.arange(S)
        off = torch.arange(W) * dil
        idx = pos[:, None] - off[None, :]
        mask = idx >= 0
        idx_c = torch.where(mask, idx, 0).reshape(-1)
        kg = k[:, :, idx_c, :].reshape(B, H, S, W, Dh)
        vg = v[:, :, idx_c, :].reshape(B, H, S, W, Dh)
        logits = torch.einsum("bhsd,bhswd->bhsw", q, kg) * scale
        logits = torch.where(mask[None, None, :, :], logits, -1e9)
        attn = _softmax(logits, axis=-1)
        o = torch.einsum("bhsw,bhswd->bhsd", attn, vg)
        return (lambda x, *d: x.permute(*d))(o, 0, 2, 1, 3).reshape(B, S, D) @ wo

    x = A_x
    g = _sigmoid((x * gate_w).sum(-1, keepdims=True))
    a = _A_ref(x, A_dft_seq_re, A_dft_seq_im, A_dft_hid_re, A_dft_hid_im)
    b = _B_ref(x, B_wqkv, B_wo)
    return g * a + (1 - g) * b
```

```python
import re

TRANS = ("v_exp_f32", "v_log_f32", "v_rcp_f32", "v_rsq_f32", "v_sqrt_f32", "v_sin_f32", "v_cos_f32", "v_rcp_iflag_f32")
_REG = re.compile(r"^-?(?:abs\()?\|?([vsa])(?:(\d+)|\[(\d+):(\d+)\])\)?\|?$")

def regs(tok):
    tok = tok.strip()
    if tok in ("vcc",): return {"s106", "s107"}
    if tok == "vcc_lo": return {"s106"}
    if tok == "vcc_hi": return {"s107"}
    if tok == "exec": return {"exec"}
    if tok in ("exec_lo", "exec_hi"): return {"exec"}
    if tok == "m0": return {"m0"}
    m = _REG.match(tok)
    if not m: return set()
    f = m.group(1)
    if m.group(2) is not None: return {f + m.group(2)}
    return {f + str(i) for i in range(int(m.group(3)), int(m.group(4)) + 1)}

def split_ops(s):
    out, depth, cur = [], 0, ""
    for ch in s:
        if ch in "[(": depth += 1
        if ch in "])": depth -= 1
        if ch == "," and depth == 0:
            out.append(cur.strip()); cur = ""
        else: cur += ch
    if cur.strip(): out.append(cur.strip())
    return out

class Ins:
    def __init__(self, text):
        self.text = text
        t = text.split(";")[0].strip()
        self.is_label = t.endswith(":")
        self.is_dir = t.startswith(".") or t == ""
        self.mn = ""; self.w = set(); self.r = set(); self.ws = 1
        self.kind = None
        if self.is_label or self.is_dir:
            self.ws = 0; return
        p = t.split(None, 1)
        mn = p[0]; self.mn = mn
        rest = p[1] if len(p) > 1 else ""
        ops = split_ops(rest)
        mods = ""
        if ops:
            last = ops[-1].split()
            ops[-1] = last[0]; mods = " ".join(last[1:])
        self.mods = mods; self.ops = ops
        R = lambda i: regs(ops[i]) if i < len(ops) else set()
        allr = lambda a: set().union(*[R(i) for i in range(a, len(ops))]) if a < len(ops) else set()
        base = re.sub(r"_(e32|e64|dpp|sdwa)$", "", mn); self.base = base
        self.dpp = mn.endswith("_dpp") or "row_" in mods or "quad_perm" in mods
        if mn == "s_nop":
            self.kind = "nop"; self.ws = int(ops[0], 0) + 1
        elif mn.startswith("v_mfma"):
            self.kind = "mfma"; self.w = R(0); self.A = R(1); self.B = R(2); self.C = R(3); self.r = self.A | self.B | self.C
            self.passes = 8 if "32x32" in mn else 4
        elif mn.startswith("v_"):
            self.kind = "valu"
            if base.startswith("v_permlane") and "swap" in base:
                self.w = R(0) | R(1); self.r = R(0) | R(1)
            elif base.startswith("v_cmp"):
                self.w = R(0); self.r = allr(1)
                if base.startswith("v_cmpx"): self.w |= {"exec"}
            elif base in ("v_add_co_u32", "v_sub_co_u32", "v_addc_co_u32", "v_subb_co_u32"):
                self.w = R(0) | R(1); self.r = allr(2)
            else:
                self.w = R(0); self.r = allr(1)
                if base in ("v_fmac_f32", "v_dot2c_f32_bf16", "v_writelane_b32") or self.dpp: self.r |= R(0)
                if base == "v_cndmask_b32" and len(ops) == 3: self.r |= {"s106", "s107"}
            self.trans = base in TRANS
            self.dot = base.startswith("v_dot")
        elif mn.startswith("ds_"):
            self.kind = "ds"
            if mn.startswith("ds_read") or mn.startswith("ds_bpermute") or mn.startswith("ds_swizzle"):
                self.w = R(0); self.r = allr(1)
            else: self.r = allr(0)
        elif mn.startswith("buffer_") or mn.startswith("global_"):
            self.kind = "vmem"
            self.lds = (" lds" in " " + mods) or "_lds_" in mn
            if mn.startswith("buffer_load") and not self.lds:
                self.w = R(0); self.r = allr(1)
            elif mn.startswith("global_load") and not self.lds:
                self.w = R(0); self.r = allr(1)
            else:
                self.r = allr(0)
                if "atomic" in mn and "sc0" in mods: self.w = R(0)
            if self.lds: self.r |= {"m0"}
            self.wide_store = ("store" in mn) and ("x4" in mn or "x3" in mn)
            self.data = R(0) if mn.startswith("buffer_store") else (R(1) if mn.startswith("global_store") else set())
        elif mn.startswith("s_"):
            self.kind = "salu"
            nodst = ("s_cmp", "s_waitcnt", "s_barrier", "s_branch", "s_cbranch", "s_endpgm", "s_setprio", "s_sleep", "s_bitcmp", "s_setpc")
            if mn.startswith(nodst): self.r = allr(0)
            else:
                self.w = R(0); self.r = allr(1)
                if "saveexec" in mn: self.w |= {"exec"}
        else:
            raise ValueError("unknown instruction: " + text)

def need(p, c):
    n = 0
    vw = {x for x in p.w if x[0] in "va" and x != "vcc"}
    sw = {x for x in p.w if x[0] == "s"}
    if p.kind == "valu":
        if c.kind == "mfma" and vw & c.r: n = max(n, 2)
        if c.kind == "valu":
            if vw & c.r:
                if p.trans and not c.trans: n = max(n, 1)
                if c.dpp: n = max(n, 2)
                if c.base.startswith("v_permlane"): n = max(n, 2)
                if c.base in ("v_readlane_b32", "v_readfirstlane_b32"): n = max(n, 1)
            if p.dot and (vw & (c.r | c.w)):
                same_c = c.dot and c.base == p.base and not (vw & (regs(c.ops[1]) | regs(c.ops[2])))
                if not same_c: n = max(n, 3)
            if sw & c.r: n = max(n, 4 if c.base in ("v_readlane_b32", "v_writelane_b32") else 2)
            if "exec" in p.w: n = max(n, 5 if c.dpp else 4)
        if p.dot and c.kind in ("mfma", "ds", "vmem") and vw & (c.r | c.w): n = max(n, 3)
        if c.kind == "vmem" and sw & c.r: n = max(n, 5)
        if c.kind == "mfma" and "exec" in p.w: n = max(n, 4)
        if p.trans and c.kind in ("ds", "vmem") and vw & c.r: n = max(n, 1)
    if p.kind == "salu" and "m0" in p.w and c.kind == "vmem" and getattr(c, "lds", False): n = max(n, 1)
    if p.kind == "mfma":
        big = {4: 8, 8: 12}[p.passes]
        if c.kind == "mfma":
            if p.w & (c.A | c.B): n = max(n, big)
            if p.w & c.C:
                if not (p.w == c.C and p.passes == c.passes): n = max(n, {4: 6, 8: 10}[p.passes])
        elif c.kind in ("valu", "ds", "vmem"):
            if p.w & (c.r | c.w): n = max(n, big)
            if c.kind == "valu" and p.C & c.w: n = max(n, {4: 3, 8: 7}[p.passes])
    if p.kind == "vmem" and getattr(p, "wide_store", False) and p.data & c.w:
        n = max(n, 2 if c.kind == "valu" else 1)
    return n

def fix_hazards(lines, verbose=False):
    out, hist, added = [], [], 0
    for text in lines:
        c = Ins(text)
        if c.ws == 0:
            out.append(text); continue
        if c.kind != "nop":
            dist, pad = 0, 0
            for p in reversed(hist):
                if dist >= 20: break
                if p.kind != "nop":
                    pad = max(pad, need(p, c) - dist)
                dist += p.ws
            if pad > 0:
                added += pad
                while pad > 0:
                    k = min(pad, 16)
                    nop = Ins(f"s_nop {k-1}")
                    out.append(nop.text); hist.append(nop); pad -= k
        out.append(text); hist.append(c)
        if len(hist) > 40: hist = hist[-40:]
    if verbose: print("hazard nops added:", added)
    return out

class Asm:
    def __init__(self): self.L = []
    def __call__(self, *texts):
        for t in texts:
            for x in t.split("\n"):
                x = x.strip()
                if x: self.L.append(x)
    def lines(self): return self.L

def vr(a, n=1): return f"v{a}" if n == 1 else f"v[{a}:{a+n-1}]"
def sr(a, n=1): return f"s{a}" if n == 1 else f"s[{a}:{a+n-1}]"

def interleave(main, fill, start=0, per=1):
    out = []; fi = 0
    for i, m in enumerate(main):
        out.append(m)
        if i >= start:
            for _ in range(per):
                if fi < len(fill):
                    out.extend(fill[fi]); fi += 1
    while fi < len(fill):
        out.extend(fill[fi]); fi += 1
    return out
```

```python
import sys
sys.path.insert(0, "work")
from asmlib import *

NAME = "gated_mix__spectral_fnet__sliding_local_dilated__prompt"
WS_O, WS_V, WS_G = 0, 0x200000, 0x440000
VP = 4224
WS_SIZE = 0x480000
NEG = 0xF149F2CA
SCL = 0x3EB8AA3B

P_X, P_SRE, P_SIM, P_HRE, P_HIM, P_BX, P_WQ, P_WO, P_GW, P_OUT, P_DBG, P_WS = range(16, 40, 2)
R_X, R_WQ, R_HRE, R_HIM, R_GW, R_WS, R_CODE, R_WO, R_OUT = range(40, 76, 4)

def srd(a, r, p, size, delta=0):
    if delta:
        a(f"s_sub_u32 s{r}, s{p}, {delta}", f"s_subb_u32 s{r+1}, s{p+1}, 0")
    else:
        a(f"s_mov_b32 s{r}, s{p}", f"s_mov_b32 s{r+1}, s{p+1}")
    a(f"s_mov_b32 s{r+2}, {size+delta}", f"s_mov_b32 s{r+3}, 0x20000")

class VQ:
    def __init__(self): self.q = []
    def add(self, tag, n=1): self.q += [tag]*n
    def wait(self, tag):
        idx = max(i for i, t in enumerate(self.q) if t == tag)
        n = len(self.q) - 1 - idx
        self.q = self.q[idx+1:]
        assert n <= 63
        return f"s_waitcnt vmcnt({n})"

def mfma16(d, x, y, c): return f"v_mfma_f32_16x16x32_bf16 {vr(d,4)}, {vr(x,4)}, {vr(y,4)}, {c if isinstance(c,str) else vr(c,4)}"
def cvt(d, x, y): return f"v_cvt_pk_bf16_f32 v{d}, v{x}, v{y}"

def stamp(a, o, k):
    if o.get("stamp"): a(f"s_memtime s[{80+2*k}:{81+2*k}]")
def stamps_out(a, o, n, slot):
    if not o.get("stamp"): return
    a("s_waitcnt lgkmcnt(0)")
    for k in range(1, n): a(f"s_sub_u32 s{80+2*k}, s{80+2*k}, s80")
    a("s_lshl_b32 s78, s2, 2", "s_add_u32 s78, s78, s3", "s_lshl_b32 s78, s78, 5", f"s_add_u32 s78, s78, {0x460000 + slot*0x8000}")
    a("v_mov_b32 v250, s78")
    for k in range(n):
        a(f"v_mov_b32 v251, s{80+2*k}", f"buffer_store_dword v251, v250, {sr(R_WS,4)}, 0 offen offset:{4*k}")

def k1(o):
    a = Asm(); kn = "k1_kernel"
    stamp(a, o, 0)
    a("s_cmp_ge_u32 s2, 256", "s_cbranch_scc1 K1_END")
    a("s_load_dwordx16 s[16:31], s[0:1], 0", "s_load_dwordx8 s[32:39], s[0:1], 64")
    a("v_lshrrev_b32 v15, 6, v0", "v_and_b32 v1, 63, v0")
    a("s_and_b32 s4, s2, 7", "s_lshr_b32 s5, s2, 3")
    a("v_readfirstlane_b32 s3, v15")
    vq0 = VQ()
    if o.get("codepf", 1):
        a(f"s_getpc_b64 {sr(R_CODE,2)}", "K1_PC:", f"s_mov_b32 s{R_CODE+2}, CODE_END-K1_PC", f"s_mov_b32 s{R_CODE+3}, 0x20000")
        a("v_lshlrev_b32 v14, 7, v0")
        a(f"buffer_load_dword v220, v14, {sr(R_CODE,4)}, 0 offen"); vq0.add("pf")
    a("v_lshrrev_b32 v16, 3, v1", "v_and_b32 v17, 7, v1")
    a("v_lshrrev_b32 v18, 1, v16", "v_xor_b32 v18, v17, v18", "v_lshlrev_b32 v18, 4, v18")
    a("v_lshlrev_b32 v19, 4, v1")
    a("s_lshl_b32 s6, s2, 3", "s_lshl_b32 s7, s3, 1", "s_add_u32 s6, s6, s7", "s_lshl_b32 s7, s6, 10")
    a("s_waitcnt lgkmcnt(0)")
    srd(a, R_X, P_X, 2048*1024)
    srd(a, R_GW, P_GW, 1024)
    a(f"buffer_load_dwordx4 v[204:207], v19, {sr(R_X,4)}, s7 offen",
      f"buffer_load_dwordx4 v[208:211], v19, {sr(R_X,4)}, s7 offen offset:1024",
      f"buffer_load_dwordx4 v[212:215], v19, {sr(R_GW,4)}, 0 offen"); vq0.add("gate", 3)
    srd(a, R_WS, P_WS, WS_SIZE)
    a("v_and_b32 v20, 15, v1", "v_lshrrev_b32 v21, 4, v1")
    a("v_lshrrev_b32 v11, 1, v20", "v_xor_b32 v11, v21, v11", "v_lshlrev_b32 v11, 4, v11", "v_lshl_or_b32 v11, v20, 7, v11")
    a("v_xor_b32 v12, 64, v11")
    a("s_cmp_ge_u32 s4, 6", "s_cbranch_scc1 K1_SPEC")

    def gate(a, vq):
        a(vq.wait("gate"))
        a("v_mov_b32 v216, 0", "v_mov_b32 v217, 0")
        for i in range(4):
            a(f"v_dot2c_f32_bf16 v216, v{204+i}, v{212+i}", f"v_dot2c_f32_bf16 v217, v{208+i}, v{212+i}")
        for sh in (1, 2, 4, 8):
            for r in (216, 217): a(f"v_add_f32_dpp v{r}, v{r}, v{r} row_shr:{sh} row_mask:0xf bank_mask:0xf bound_ctrl:1")
        for r in (216, 217): a(f"v_add_f32_dpp v{r}, v{r}, v{r} row_bcast:15 row_mask:0xa bank_mask:0xf")
        for r in (216, 217): a(f"v_add_f32_dpp v{r}, v{r}, v{r} row_bcast:31 row_mask:0xc bank_mask:0xf")
        for r in (216, 217): a(f"v_mul_f32 v{r}, 0xbfb8aa3b, v{r}")
        for r in (216, 217): a(f"v_exp_f32 v{r}, v{r}")
        for r in (216, 217): a(f"v_add_f32 v{r}, 1.0, v{r}")
        for r in (216, 217): a(f"v_rcp_f32 v{r}, v{r}")
        a("s_lshl_b32 s76, s6, 2", f"s_add_u32 s76, s76, {WS_G}", "v_mov_b32 v218, s76", "v_mov_b32 v219, 0x80000000",
          "v_cmp_eq_u32 vcc, 63, v1", "v_cndmask_b32 v218, v219, v218, vcc")
    def gate_store(a):
        a(f"buffer_store_dwordx2 v[216:217], v218, {sr(R_WS,4)}, 0 offen")
    def tail_prefetch(a, vq):
        if o.get("wopf", 1):
            srd(a, R_WO, P_WO, 512*1024)
            a("v_lshlrev_b32 v221, 7, v1", "s_lshl_b32 s76, s5, 14", "s_lshl_b32 s77, s3, 12", "s_add_u32 s76, s76, s77")
            a("s_mov_b32 exec_hi, 0", f"buffer_load_dword v220, v221, {sr(R_WO,4)}, s76 offen", "s_mov_b32 exec_hi, -1"); vq.add("pf")

    vq = VQ(); vq.q = list(vq0.q)
    a("s_lshr_b32 s8, s4, 1", "s_lshl_b32 s8, s8, 3", "s_lshr_b32 s9, s5, 2", "s_add_u32 s8, s8, s9")
    a("s_and_b32 s11, s5, 3")
    hgm = o.get("hgmap", 0)
    if hgm == 0: a("s_and_b32 s10, s4, 1", "s_lshl_b32 s10, s10, 2", "s_add_u32 s10, s10, s11")
    elif hgm == 1: a("s_and_b32 s10, s4, 1", "s_lshl_b32 s12, s11, 1", "s_add_u32 s10, s10, s12")
    elif hgm == 2: a("s_and_b32 s10, s4, 1", "s_lshl_b32 s10, s10, 1", "s_and_b32 s12, s11, 1", "s_add_u32 s10, s10, s12", "s_and_b32 s12, s11, 2", "s_lshl_b32 s12, s12, 1", "s_add_u32 s10, s10, s12")
    a("s_lshr_b32 s12, s8, 1", "s_mul_i32 s12, s12, 85")
    a("s_and_b32 s13, s8, 1", "s_lshl_b32 s14, s12, 1", "s_add_u32 s14, s14, s13", "s_lshl_b32 s14, s14, 10")
    rq = o.get("rotq", 0)
    if rq == 0: a("s_mov_b32 s15, 0")
    elif rq == 1: a("s_lshl_b32 s15, s11, 1")
    elif rq == 2: a("s_lshl_b32 s15, s11, 1", "s_add_u32 s15, s15, s9")
    a("s_mul_i32 s76, s3, 49152", "s_add_u32 s76, s76, s14", "s_and_b32 s77, s3, 1", "s_lshl_b32 s77, s77, 6")
    a("v_xor_b32 v2, s77, v18", "v_lshl_add_u32 v2, v16, 11, v2", "v_add_u32 v2, s76, v2")
    a("s_movk_i32 s77, 15360", "v_xad_u32 v3, v2, 64, s77", "v_add_u32 v4, 30720, v2")
    srd(a, R_WQ, P_WQ, 512*3072)
    a("s_mul_i32 s76, s3, 49152", "s_lshl_b32 s77, s10, 7", "s_add_u32 s76, s76, s77")
    for j in range(3):
        a(f"v_add_u32 v22, {8*j}, v16", "v_mul_u32_u24 v23, 43, v22", "v_lshrrev_b32 v24, 7, v23", "v_and_b32 v24, 2, v24",
          "v_lshrrev_b32 v23, 8, v23", "v_and_b32 v23, 4, v23", "v_or_b32 v23, v23, v24", "v_xor_b32 v23, v23, v17",
          "v_lshlrev_b32 v23, 4, v23", f"v_subrev_u32 v22, {j}, v22", "v_lshl_add_u32 v23, v22, 10, v23", f"v_add_u32 v{5+j}, s76, v23")
    a("s_movk_i32 s77, 24576")
    for j in range(3): a(f"v_xad_u32 v{8+j}, v{5+j}, 64, s77")
    a("s_mul_i32 s72, s3, 3072", "s_mul_i32 s73, s3, 6144", "s_add_u32 s73, s73, 49152")
    def q_issue(c):
        st = c % 4; L = []
        L.append([f"s_add_u32 s74, s15, {c}", "s_and_b32 s74, s74, 7", f"s_mul_i32 s75, s74, {64*3072}", "s_lshl_b32 s74, s74, 7",
                  f"s_add_u32 m0, s72, {st*12288}", "s_nop 0", f"buffer_load_dwordx4 v2, {sr(R_X,4)}, s74 offen lds"])
        for j in (1, 2): L.append([f"buffer_load_dwordx4 v{2+j}, {sr(R_X,4)}, s74 offen offset:{1024*j} lds"])
        for h in range(2):
            for j in range(3):
                x = [f"s_add_u32 m0, s73, {st*24576 + h*3072}", "s_nop 0"] if j == 0 else []
                off = f" offset:{1024*j}" if j else ""
                L.append(x + [f"buffer_load_dwordx4 v{5+3*h+j}, {sr(R_WQ,4)}, s75 offen{off} lds"])
        vq.add(("c", c), 9)
        return L
    stamp(a, o, 1)
    for c in range(4):
        for g_ in q_issue(c): a(*g_)
    a("v_lshrrev_b32 v22, 2, v20", "v_lshl_add_u32 v22, v21, 3, v22", "v_mul_u32_u24 v22, 384, v22")
    a("v_lshrrev_b32 v23, 3, v20", "v_and_b32 v24, 1, v21", "v_lshl_or_b32 v23, v24, 1, v23", "v_xor_b32 v23, s3, v23")
    a("v_lshl_add_u32 v22, v23, 5, v22", "v_and_b32 v23, 3, v20", "v_lshl_add_u32 v22, v23, 3, v22")
    a("v_add_u32 v13, 49152, v22", "v_add_u32 v14, 98304, v22")
    MC, MP, SM, ONES = 160, 164, 168, 172
    a("v_lshlrev_b32 v22, 2, v21", "v_sub_u32 v22, v20, v22", f"v_mov_b32 v24, {NEG:#x}", "v_mov_b32 v25, 0")
    for r in range(4):
        a(f"v_subrev_u32 v23, {r}, v22", "v_cmp_gt_u32 vcc, 8, v23", f"v_cndmask_b32 v{MC+r}, v24, v25, vcc")
    for r in range(4):
        a(f"v_subrev_u32 v23, {r}, v22", "v_cmp_gt_i32 vcc, -8, v23", f"v_cndmask_b32 v{MP+r}, v24, v25, vcc")
    a("v_mov_b32 v26, 0xffff", "v_mov_b32 v27, 0xffff0000")
    for h in range(2):
        a(f"v_cmp_le_i32 vcc, {2*h}, v22", "v_cndmask_b32 v28, v25, v26, vcc", f"v_cmp_le_i32 vcc, {2*h+1}, v22", "v_cndmask_b32 v29, v25, v27, vcc",
          f"v_or_b32 v{SM+h}, v28, v29")
    for i in range(4): a(f"v_mov_b32 v{ONES+i}, 0x3f803f80")
    a("v_lshrrev_b32 v22, 1, v21", "s_lshl_b32 s76, s3, 1", "v_add_u32 v22, s76, v22", "v_and_b32 v23, 7, v20", "v_xor_b32 v22, v22, v23",
      "v_lshlrev_b32 v22, 4, v22", "v_lshl_or_b32 v22, v20, 7, v22", "v_and_b32 v23, 1, v21", "v_lshl_or_b32 v176, v23, 3, v22")
    a("s_mul_i32 s76, s3, 3072", "v_add_u32 v177, s76, v19")
    a("v_xor_b32 v22, v17, v16", "v_lshlrev_b32 v22, 4, v22", "s_lshl_b32 s76, s10, 7", "s_add_u32 s76, s76, s14", f"s_add_u32 s76, s76, {WS_O}", "v_add_u32 v22, s76, v22")
    a("s_cmp_eq_u32 s12, 0", "s_cselect_b32 s77, 0, 11", "s_sub_u32 s78, 1024, s12", "s_sub_u32 s78, s78, s77", "s_mul_i32 s76, s3, 24", "v_mov_b32 v24, 0x80000000")
    for j in range(3):
        a(f"v_add_u32 v23, s76, v16", *( [f"v_add_u32 v23, {8*j}, v23"] if j else []),
          "v_lshl_add_u32 v26, v23, 11, v22", "v_subrev_u32 v23, s77, v23", "v_cmp_gt_u32 vcc, s78, v23", f"v_cndmask_b32 v{178+j}, v24, v26, vcc")
    gate(a, vq)
    XA = lambda s, b: 16 + 24*(s % 2) + 4*b
    WB = lambda s, sg: 64 + 12*(s % 2) + 4*sg
    ACC = lambda b, sg: 88 + 12*b + 4*sg
    def q_reads(s):
        c, ks = s // 2, s % 2; st = c % 4; L = []
        wb = 13 if st < 2 else 14
        for sg in range(3):
            for sub in range(2):
                L.append([f"ds_read_b64_tr_b16 {vr(WB(s,sg)+2*sub,2)}, v{wb} offset:{(st%2)*24576 + (32*ks+4*sub)*384 + sg*128}"])
        X = [[f"ds_read_b128 {vr(XA(s,b),4)}, v{11+ks} offset:{st*12288 + b*2048}"] for b in range(6)]
        return L[:2] + X[:1] + L[2:] + X[1:]
    def q_mfmas(s):
        L = []
        for b in range(6):
            for sg in range(3):
                c_ = "0" if s == 0 else ACC(b, sg)
                if sg < 2: L.append(mfma16(ACC(b,sg), WB(s,sg), XA(s,b), c_))
                else: L.append(mfma16(ACC(b,sg), XA(s,b), WB(s,sg), c_))
        return L
    a(vq.wait(("c", 0)), "s_barrier")
    stamp(a, o, 2)
    for g_ in q_reads(0): a(*g_)
    for s in range(16):
        c, ks = s // 2, s % 2
        fill = []
        a("s_waitcnt lgkmcnt(0)")
        if ks == 1 and c < 7:
            a(vq.wait(("c", c+1)), "s_barrier")
        if s < 15: fill += q_reads(s+1)
        if ks == 1 and c + 4 < 8: fill += q_issue(c+4)
        if ks == 1 and c == 4:
            t = Asm(); tail_prefetch(t, vq); fill.append(t.L)
        a(*interleave(q_mfmas(s), fill))
    stamp(a, o, 3)
    QB = lambda b: 16 + 2*b
    KB = lambda b: 28 + 2*b
    VB = lambda b: 40 + 2*b
    MX = lambda b: 56 + b
    PP = lambda b: 184 + 4*b
    SC = lambda b: ACC(b, 0)
    SP = lambda b: ACC(b, 1)
    OO = lambda b: ACC(b, 2)
    for sg, f in ((1, KB), (0, QB), (2, VB)):
        for b in range(6):
            a(cvt(f(b), ACC(b,sg), ACC(b,sg)+1), cvt(f(b)+1, ACC(b,sg)+2, ACC(b,sg)+3))
    for b in range(6):
        a(f"v_mfma_f32_16x16x16_bf16 {vr(SC(b),4)}, {vr(KB(b),2)}, {vr(QB(b),2)}, {vr(MC,4)}")
        if b: a(f"v_mfma_f32_16x16x16_bf16 {vr(SP(b),4)}, {vr(KB(b-1),2)}, {vr(QB(b),2)}, {vr(MP,4)}")
    for b in range(6):
        if b:
            for r in range(4): a(f"v_max_f32 v{SC(b)+r}, v{SC(b)+r}, v{SP(b)+r}")
        a(f"v_max3_f32 v{MX(b)}, v{SC(b)}, v{SC(b)+1}, v{SC(b)+2}", f"v_max_f32 v{MX(b)}, v{MX(b)}, v{SC(b)+3}")
    prs = [(0, 1), (2, 3), (4, 5)]
    for x, y in prs: a(f"v_permlane32_swap_b32 v{MX(x)}, v{MX(y)}")
    for x, y in prs: a(f"v_max_f32 v{MX(x)}, v{MX(x)}, v{MX(y)}")
    for x, y in prs: a(f"v_mov_b32 v{MX(y)}, v{MX(x)}")
    for x, y in prs: a(f"v_permlane16_swap_b32 v{MX(x)}, v{MX(y)}")
    for x, y in prs: a(f"v_max_f32 v{MX(x)}, v{MX(x)}, v{MX(y)}")
    for x, y in prs: a(f"v_mul_f32 v{MX(x)}, {SCL:#x}, v{MX(x)}")
    for x, y in prs: a(f"v_mov_b32 v{MX(y)}, v{MX(x)}")
    a(f"s_mov_b32 s76, {SCL:#x}")
    for x, y in prs: a(f"v_permlane32_swap_b32 v{MX(x)}, v{MX(y)}")
    for b in range(6):
        for r in range(4): a(f"v_fma_f32 v{SC(b)+r}, v{SC(b)+r}, s76, -v{MX(b)}")
        for r in range(4): a(f"v_exp_f32 v{SC(b)+r}, v{SC(b)+r}")
    for b in range(6):
        if b == 0:
            a(cvt(PP(0), SC(0), SC(0)+1), cvt(PP(0)+1, SC(0)+2, SC(0)+3), f"v_mov_b32 v{PP(0)+2}, 0", f"v_mov_b32 v{PP(0)+3}, 0")
        else:
            a(cvt(PP(b), SC(b), SC(b)+1), cvt(PP(b)+1, SC(b)+2, SC(b)+3))
            a(f"v_and_b32 v{PP(b)+2}, v{PP(b)}, v{SM}", f"v_and_b32 v{PP(b)+3}, v{PP(b)+1}, v{SM+1}")
            a(f"v_xor_b32 v{PP(b)}, v{PP(b)}, v{PP(b)+2}", f"v_xor_b32 v{PP(b)+1}, v{PP(b)+1}, v{PP(b)+3}")
    for b in range(6):
        a(mfma16(SP(b), ONES, PP(b), "0"), mfma16(OO(b), VB(max(b-1, 0)), PP(b), "0"))
    for b in range(6): a(f"v_rcp_f32 v{MX(b)}, v{SP(b)}")
    for b in range(6):
        for r in range(4): a(f"v_mul_f32 v{OO(b)+r}, v{OO(b)+r}, v{MX(b)}")
        a(cvt(QB(b), OO(b), OO(b)+1), cvt(QB(b)+1, OO(b)+2, OO(b)+3))
        a(f"ds_write_b64 v176, {vr(QB(b),2)} offset:{b*2048}")
    a("s_waitcnt lgkmcnt(0)", "s_barrier")
    for j in range(3): a(f"ds_read_b128 {vr(28+4*j,4)}, v177 offset:{j*1024}")
    gate_store(a)
    for j in range(3):
        a(f"s_waitcnt lgkmcnt({2-j})", f"buffer_store_dwordx4 {vr(28+4*j,4)}, v{178+j}, {sr(R_WS,4)}, 0 offen")
    stamp(a, o, 4)
    stamps_out(a, o, 5, 0)
    a("s_endpgm")

    a("K1_SPEC:")
    vq = VQ(); vq.q = list(vq0.q)
    a("s_sub_u32 s8, s4, 6", "s_lshl_b32 s8, s8, 3", "s_lshr_b32 s9, s5, 2", "s_add_u32 s8, s8, s9", "s_and_b32 s10, s5, 3")
    rs = o.get("rots", 0)
    if rs == 0: a("s_mov_b32 s15, 0")
    elif rs == 1: a("s_lshl_b32 s15, s10, 1")
    elif rs == 2: a("s_lshl_b32 s15, s10, 1", "s_add_u32 s15, s15, s9")
    a("s_lshl_b32 s76, s8, 2", "s_add_u32 s76, s76, s3", "s_lshl_b32 s76, s76, 10")
    a("v_lshl_add_u32 v2, v16, 16, v18", "v_add_u32 v2, s76, v2")
    a(f"s_mov_b32 s77, {8*65536-1024}", "v_xad_u32 v3, v2, 64, s77", f"v_add_u32 v4, {2*(8*65536-1024)}, v2", f"v_add_u32 v5, {2*(8*65536-1024)}, v3")
    a("s_lshl_b32 s11, s10, 6", "s_lshl_b32 s77, s3, 4", "s_add_u32 s11, s11, s77", "s_lshl_b32 s76, s11, 10")
    a("v_lshl_add_u32 v6, v16, 10, v18", "v_add_u32 v6, s76, v6", "s_movk_i32 s77, 7168", "v_xad_u32 v7, v6, 64, s77")
    srd(a, R_HRE, P_HRE, 512*1024)
    srd(a, R_HIM, P_HIM, 512*1024, delta=2048)
    a("s_lshl_b32 s72, s3, 12", "s_add_u32 s73, s72, 65536")
    a("s_cmp_eq_u32 s11, 0", "s_cselect_b32 s12, 0xffffff00, -1")
    a("v_mov_b32 v22, 0xbf803f80", "v_mov_b32 v23, v22", "v_mov_b32 v24, v22", "v_mov_b32 v25, v22")
    a("v_lshlrev_b32 v26, 14, v16", "v_lshl_add_u32 v26, v17, 4, v26", "v_and_b32 v26, 0xffff, v26", "v_add_u32 v26, s73, v26")
    a("ds_write_b128 v26, v[22:25] offset:2048", "s_waitcnt lgkmcnt(0)")
    def s_issue(c):
        st = c % 4; L = []
        L.append([f"s_add_u32 s74, s15, {c}", "s_and_b32 s74, s74, 7", "s_lshl_b32 s74, s74, 7",
                  f"s_add_u32 m0, s72, {st*16384}", "s_nop 0", f"buffer_load_dwordx4 v2, {sr(R_X,4)}, s74 offen lds"])
        for j in (1, 2, 3): L.append([f"buffer_load_dwordx4 v{2+j}, {sr(R_X,4)}, s74 offen offset:{1024*j} lds"])
        L.append([f"s_add_u32 m0, s73, {st*16384}", "s_nop 0", f"buffer_load_dwordx4 v6, {sr(R_HRE,4)}, s74 offen lds"])
        L.append([f"buffer_load_dwordx4 v7, {sr(R_HRE,4)}, s74 offen offset:1024 lds"])
        L.append(["s_mov_b32 exec_lo, s12", f"buffer_load_dwordx4 v6, {sr(R_HIM,4)}, s74 offen offset:2048 lds", "s_mov_b32 exec_lo, -1"])
        L.append([f"buffer_load_dwordx4 v7, {sr(R_HIM,4)}, s74 offen offset:3072 lds"])
        vq.add(("c", c), 8)
        return L
    stamp(a, o, 1)
    for c in range(4):
        for g_ in s_issue(c): a(*g_)
    a("v_add_u32 v13, s73, v11", "v_add_u32 v14, s73, v12")
    COS, SIN, NCOS = 160, 168, 176
    a("v_cvt_f32_u32 v22, v20", "v_cvt_f32_u32 v23, v21", "v_mul_f32 v23, 4.0, v23")
    for tt in range(2):
        if tt: a("v_add_f32 v22, 0x41800000, v22")
        a("v_mul_f32 v24, 0x3d000000, v22", "v_mul_f32 v25, v24, v23")
        for j in range(8):
            k = 16*(j//4) + j % 4
            if k > 2: a(f"v_mov_b32 v44, {float(k)}", f"v_fma_f32 v{26+j}, v24, v44, v25")
            if k == 0: a(f"v_mov_b32 v{26+j}, v25")
            if k == 1: a(f"v_add_f32 v{26+j}, v24, v25")
            if k == 2: a(f"v_fma_f32 v{26+j}, v24, 2.0, v25")
        for j in range(8): a(f"v_sin_f32 v{34+j}, v{26+j}", f"v_cos_f32 v{26+j}, v{26+j}")
        for i in range(4):
            a(cvt(COS+4*tt+i, 26+2*i, 27+2*i), cvt(SIN+4*tt+i, 34+2*i, 35+2*i), f"v_xor_b32 v{NCOS+4*tt+i}, 0x80008000, v{COS+4*tt+i}")
    a(f"s_mul_i32 s76, s8, {VP}", "s_lshl_b32 s77, s11, 4", "s_add_u32 s76, s76, s77", f"s_add_u32 s76, s76, {WS_V}")
    a(f"v_mul_u32_u24 v8, {4*16*VP}, v21", "v_lshl_add_u32 v8, v20, 4, v8", "v_add_u32 v8, s76, v8")
    a(f"v_mul_u32_u24 v9, {16*VP}, v1", "s_add_u32 s76, s76, 4096", "v_add_u32 v9, s76, v9")
    gate(a, vq)
    XA = lambda s, mt: 16 + 32*(s % 2) + 4*mt
    DB = lambda s, p: 80 + 8*(s % 2) + 4*p
    ACC = lambda mt, p: 96 + 8*mt + 4*p
    def s_reads(s):
        c, ks = s // 2, s % 2; st = c % 4
        D = [[f"ds_read_b128 {vr(DB(s,p),4)}, v{13+ks} offset:{st*16384 + p*2048}"] for p in range(2)]
        X = [[f"ds_read_b128 {vr(XA(s,mt),4)}, v{11+ks} offset:{st*16384 + mt*2048}"] for mt in range(8)]
        return D[:1] + X[:1] + D[1:] + X[1:]
    def s_mfmas(s):
        return [mfma16(ACC(mt,p), XA(s,mt), DB(s,p), "0" if s == 0 else ACC(mt,p)) for mt in range(8) for p in range(2)]
    a(vq.wait(("c", 0)), "s_barrier")
    stamp(a, o, 2)
    for g_ in s_reads(0): a(*g_)
    for s in range(16):
        c, ks = s // 2, s % 2
        fill = []
        a("s_waitcnt lgkmcnt(0)")
        if ks == 1 and c < 7:
            a(vq.wait(("c", c+1)), "s_barrier")
        if s < 15: fill += s_reads(s+1)
        if ks == 1 and c + 4 < 8: fill += s_issue(c+4)
        if ks == 1 and c == 4:
            t = Asm(); tail_prefetch(t, vq); fill.append(t.L)
        a(*interleave(s_mfmas(s), fill))
    stamp(a, o, 3)
    BA = lambda q: 16 + 8*q
    BB = lambda q: 20 + 8*q
    for q in range(4):
        for p, f in ((0, BA), (1, BB)):
            for hf in range(2):
                a(cvt(f(q)+2*hf, ACC(2*q+hf,p), ACC(2*q+hf,p)+1), cvt(f(q)+2*hf+1, ACC(2*q+hf,p)+2, ACC(2*q+hf,p)+3))
    a("s_cmp_lg_u32 s11, 0", "s_cbranch_scc1 K1_NONYQ")
    NA, ND = 48, 52
    for i in range(4): a(f"v_mov_b32 v{NA+i}, v{BB(0)+i}")
    for q in range(1, 4):
        for i in range(4): a(f"v_mov_b32_dpp v{NA+i}, v{BB(q)+i} row_shr:{q} row_mask:0xf bank_mask:0xf")
    for tt in range(2):
        a(mfma16(ND+8*tt, NA, COS+4*tt, "0"), mfma16(ND+8*tt+4, NA, SIN+4*tt, "0"))
    a("s_mov_b32 exec_lo, 0x00010001", "s_mov_b32 exec_hi, 0x00010001")
    for q in range(4):
        for i in range(4): a(f"v_mov_b32 v{BB(q)+i}, 0")
    a("s_mov_b32 exec_lo, 0xffff", "s_mov_b32 exec_hi, 0")
    for tt in range(2):
        for i in range(4): a(cvt(68+4*tt+i, ND+8*tt+2*i, ND+8*tt+2*i+1))
        a(f"s_mov_b32 s76, {tt*16*16*VP}", f"buffer_store_dwordx4 {vr(68+4*tt,4)}, v9, {sr(R_WS,4)}, s76 offen")
    a("s_mov_b64 exec, -1", "s_nop 1")
    a("K1_NONYQ:")
    for q in range(4):
        for tt in range(2):
            a(mfma16(ACC(2*q+tt,0), COS+4*tt, BA(q), "0"), mfma16(ACC(2*q+tt,1), SIN+4*tt, BA(q), "0"))
        for tt in range(2):
            a(mfma16(ACC(2*q+tt,0), SIN+4*tt, BB(q), ACC(2*q+tt,0)), mfma16(ACC(2*q+tt,1), NCOS+4*tt, BB(q), ACC(2*q+tt,1)))
    gate_store(a)
    k = 0
    for tt in range(2):
        for r in range(4):
            d = 48 + 4*k; k += 1
            a(cvt(d, ACC(tt,0)+r, ACC(2+tt,0)+r), cvt(d+1, ACC(4+tt,0)+r, ACC(6+tt,0)+r),
              cvt(d+2, ACC(tt,1)+r, ACC(2+tt,1)+r), cvt(d+3, ACC(4+tt,1)+r, ACC(6+tt,1)+r))
            a(f"s_mov_b32 s76, {(16*tt+r)*16*VP}", f"buffer_store_dwordx4 {vr(d,4)}, v8, {sr(R_WS,4)}, s76 offen")
    stamp(a, o, 4)
    stamps_out(a, o, 5, 0)
    a("K1_END:", "s_endpgm")
    return a.L

def k2(o):
    a = Asm(); vq = VQ()
    stamp(a, o, 0)
    a("s_cmp_ge_u32 s2, 256", "s_cbranch_scc1 K2_END")
    a("s_load_dwordx2 s[30:31], s[0:1], 56", "s_load_dwordx8 s[32:39], s[0:1], 64")
    a("v_lshrrev_b32 v15, 6, v0", "v_and_b32 v1, 63, v0")
    a("s_and_b32 s4, s2, 7", "s_lshr_b32 s5, s2, 3")
    a("v_readfirstlane_b32 s3, v15")
    a("s_and_b32 s6, s5, 7", "s_lshr_b32 s7, s5, 3")
    a("s_lshl_b32 s8, s4, 1", "s_lshr_b32 s9, s7, 1", "s_add_u32 s8, s8, s9")
    a("s_sub_u32 s9, 32, s8", "s_cmp_eq_u32 s8, 0", "s_cselect_b32 s9, 16, s9", "s_bitcmp1_b32 s7, 0", "s_cselect_b32 s8, s9, s8")
    a("s_sub_u32 s9, 32, s8", "s_and_b32 s9, s9, 31", "s_cmp_ge_u32 s6, 4", "s_cselect_b32 s9, s9, s8")
    a("s_cselect_b32 s10, -16, 16", "s_lshl_b32 s11, s6, 10", "s_sub_u32 s12, 8192, s11", "s_cmp_ge_u32 s6, 4", "s_cselect_b32 s11, s12, s11")
    a("s_mov_b32 s98, 0x3a000000", "s_mov_b32 s99, 0xba000000", "s_cselect_b32 s13, s98, s99")
    a(f"s_mul_i32 s14, s9, {16*VP}", "s_add_u32 s14, s14, s11", f"s_mul_i32 s76, s3, {4*VP}", "s_add_u32 s14, s14, s76", f"s_add_u32 s14, s14, {WS_V}")
    a("v_mul_i32_i24 v2, s10, v1", "v_add_u32 v2, s14, v2")
    a("v_lshrrev_b32 v16, 3, v1", "v_and_b32 v17, 7, v1")
    a("v_lshrrev_b32 v18, 1, v16", "v_xor_b32 v18, v17, v18", "v_lshlrev_b32 v18, 4, v18")
    a("s_lshl_b32 s76, s3, 19", "s_lshl_b32 s77, s8, 10", "s_add_u32 s76, s76, s77", f"s_add_u32 s76, s76, {WS_O}")
    a("v_lshl_add_u32 v3, v16, 15, v18", "v_add_u32 v3, s76, v3", f"s_mov_b32 s77, {8*32768-1024}", "v_xad_u32 v4, v3, 64, s77")
    a("v_and_b32 v5, 2, v16", "v_lshlrev_b32 v5, 1, v5", "v_xor_b32 v5, v5, v17", "v_lshlrev_b32 v5, 4, v5", "v_lshl_add_u32 v5, v16, 10, v5")
    a("s_lshl_b32 s76, s3, 14", "s_lshl_b32 s77, s6, 7", "s_add_u32 s76, s76, s77", "v_add_u32 v5, s76, v5", "v_add_u32 v6, 7168, v5")
    a("s_waitcnt lgkmcnt(0)")
    srd(a, R_WS, P_WS, WS_SIZE)
    srd(a, R_WO, P_WO, 512*1024)
    stamp(a, o, 1)
    a("s_lshl_b32 s72, s3, 12", "s_add_u32 m0, s72, 131072", "s_mov_b32 s74, 0")
    for j in range(4):
        off = f" offset:{1024*j}" if j else ""
        if j: a(f"s_movk_i32 s74, {j*(VP-1024)}")
        a(f"buffer_load_dwordx4 v2, {sr(R_WS,4)}, s74 offen{off} lds")
    vq.add("V", 4)
    rk = o.get("rotk2", 0)
    a("s_mov_b32 s15, s6" if rk else "s_mov_b32 s15, 0")
    a("s_lshl_b32 s72, s3, 11", "s_add_u32 s73, s72, 65536")
    for c in range(8):
        a(f"s_add_u32 s74, s15, {c}", "s_and_b32 s74, s74, 7", "s_lshl_b32 s75, s74, 16", "s_lshl_b32 s74, s74, 7")
        a(f"s_add_u32 m0, s72, {c*8192}", "s_nop 0", f"buffer_load_dwordx4 v3, {sr(R_WS,4)}, s74 offen lds", f"buffer_load_dwordx4 v4, {sr(R_WS,4)}, s74 offen offset:1024 lds")
        a(f"s_add_u32 m0, s73, {c*8192}", "s_nop 0", f"buffer_load_dwordx4 v5, {sr(R_WO,4)}, s75 offen lds", f"buffer_load_dwordx4 v6, {sr(R_WO,4)}, s75 offen offset:1024 lds")
        vq.add(("c", c), 4)
        if c == 0:
            a("v_and_b32 v20, 31, v1", "v_lshrrev_b32 v21, 5, v1", "s_lshr_b32 s78, s3, 1", "s_and_b32 s79, s3, 1")
            a("s_lshl_b32 s76, s78, 5", "v_add_u32 v22, s76, v20", "v_lshlrev_b32 v23, 5, v22", "v_add_u32 v23, s8, v23")
            a("v_lshlrev_b32 v24, 2, v23", f"s_mov_b32 s76, {WS_G}", f"buffer_load_dword v7, v24, {sr(R_WS,4)}, s76 offen"); vq.add("g")
    srd(a, R_OUT, P_OUT, 2048*1024)
    a("v_lshrrev_b32 v24, 1, v20", "v_and_b32 v24, 7, v24", "v_xor_b32 v24, v24, v21", "v_lshlrev_b32 v24, 4, v24", "v_lshl_or_b32 v8, v22, 7, v24")
    for ks in range(1, 4): a(f"v_xor_b32 v{8+ks}, {32*ks}, v8")
    a("v_and_b32 v24, 15, v1", "v_lshrrev_b32 v25, 2, v24", "v_lshl_add_u32 v25, v21, 3, v25", "v_lshlrev_b32 v25, 7, v25")
    a("v_lshrrev_b32 v26, 3, v24", "v_xor_b32 v26, s79, v26", "v_lshl_add_u32 v25, v26, 6, v25")
    a("v_bfe_u32 v26, v1, 4, 1", "v_lshl_add_u32 v25, v26, 5, v25", "v_and_b32 v26, 3, v1", "v_lshl_add_u32 v25, v26, 3, v25", "v_add_u32 v12, 65536, v25")
    a("s_lshl_b32 s76, s79, 9", "s_add_u32 s76, s76, 131072", "v_lshlrev_b32 v24, 4, v20", "v_lshl_add_u32 v24, v21, 10, v24", "v_add_u32 v13, s76, v24")
    a("s_lshl_b32 s76, s79, 2", "v_and_b32 v24, 7, v22", "v_xor_b32 v24, s76, v24", "v_lshlrev_b32 v24, 4, v24", "v_lshl_or_b32 v24, v22, 7, v24",
      "v_lshl_or_b32 v24, v21, 3, v24", "v_add_u32 v14, 131072, v24")
    a("s_lshl_b32 s76, s3, 11", "s_add_u32 s76, s76, 131072", "v_lshlrev_b32 v24, 4, v1", "v_add_u32 v15, s76, v24")
    a("v_xor_b32 v24, v17, v16", "v_lshlrev_b32 v24, 4, v24", "v_lshl_add_u32 v24, v16, 15, v24",
      "s_lshl_b32 s76, s3, 19", "s_lshl_b32 s77, s8, 10", "s_add_u32 s76, s76, s77", "s_lshl_b32 s77, s6, 7", "s_add_u32 s76, s76, s77",
      "v_add_u32 v18, s76, v24", f"v_add_u32 v19, {8*32768}, v18")
    WF = lambda ks: 64 + 4*ks
    a("v_cvt_f32_u32 v24, v23", "v_mul_f32 v24, s13, v24", "v_cvt_f32_u32 v25, v21", "v_mul_f32 v25, 4.0, v25", "v_mul_f32 v25, v25, v24")
    a("v_mul_f32 v26, 0x41000000, v24")
    for ks in range(8):
        if ks: a("v_add_f32 v25, v25, v26")
        a("v_add_f32 v28, v25, v24", "v_fma_f32 v29, v24, 2.0, v25", "v_fma_f32 v30, v24, 2.0, v28")
        T = [25, 28, 29, 30]
        for j in range(4): a(f"v_cos_f32 v{32+j}, v{T[j]}", f"v_sin_f32 v{36+j}, v{T[j]}")
        a(cvt(WF(ks), 32, 33), cvt(WF(ks)+1, 34, 35), cvt(WF(ks)+2, 36, 37), cvt(WF(ks)+3, 38, 39))
    AA, AB = 96, 112
    FR = lambda i: 128 + 4*i
    m32 = lambda d, x, y, c: f"v_mfma_f32_32x32x16_bf16 {vr(d,16)}, {vr(x,4)}, {vr(y,4)}, {c if isinstance(c,str) else vr(c,16)}"
    a(vq.wait("V"), "s_barrier")
    stamp(a, o, 2)
    for ks in range(8): a(f"ds_read_b128 {vr(FR(ks),4)}, v13 offset:{ks*2048}")
    for ks in range(8): a(f"s_waitcnt lgkmcnt({7-ks})", m32(AA, FR(ks), WF(ks), "0" if ks == 0 else AA))
    for c in range(8):
        a(vq.wait(("c", c)), "s_barrier")
        fb = 8*(c % 2 == 0)
        for ks in range(4):
            a(f"ds_read_b128 {vr(FR(fb+2*ks),4)}, v{8+ks} offset:{c*8192}")
            for sub in range(2): a(f"ds_read_b64_tr_b16 {vr(FR(fb+2*ks+1)+2*sub,2)}, v12 offset:{c*8192 + (16*ks+4*sub)*128}")
        for ks in range(4):
            a(f"s_waitcnt lgkmcnt({9-3*ks})", m32(AB, FR(fb+2*ks+1), FR(fb+2*ks), "0" if (c == 0 and ks == 0) else AB))
    stamp(a, o, 3)
    for i in range(16): a(f"v_sub_f32 v{AA+i}, v{AA+i}, v{AB+i}")
    for i in range(16): a(f"v_fma_f32 v{AA+i}, v{AA+i}, v7, v{AB+i}")
    for i in range(8): a(cvt(32+i, AA+2*i, AA+2*i+1))
    for q in range(4):
        if q: a(f"v_xor_b32 v24, {16*q}, v14")
        a(f"ds_write_b64 v{24 if q else 14}, {vr(32+2*q,2)}")
    a("s_waitcnt lgkmcnt(0)", "s_barrier")
    for j in range(2): a(f"ds_read_b128 {vr(40+4*j,4)}, v15 offset:{j*1024}")
    for j in range(2): a(f"s_waitcnt lgkmcnt({1-j})", f"buffer_store_dwordx4 {vr(40+4*j,4)}, v{18+j}, {sr(R_OUT,4)}, 0 offen")
    stamp(a, o, 4)
    stamps_out(a, o, 5, 1)
    a("K2_END:", "s_endpgm")
    return a.L

def kd(name, vg):
    return f""".amdhsa_kernel {name}
  .amdhsa_next_free_vgpr {vg}
  .amdhsa_next_free_sgpr 102
  .amdhsa_accum_offset {vg}
  .amdhsa_group_segment_fixed_size 0
  .amdhsa_kernarg_size 96
  .amdhsa_user_sgpr_count 2
  .amdhsa_user_sgpr_kernarg_segment_ptr 1
  .amdhsa_system_sgpr_workgroup_id_x 1
.end_amdhsa_kernel
"""

def build(o):
    hdr = [l for l in open(f"cdna_kernels/{NAME}.s.ref").read().split("\n") if l.startswith(";") and "@launch" not in l and "Override" not in l and "grid=ceil" not in l]
    out = hdr + ["; @launch kernel=k1_kernel grid=(256,1,1) block=(256,1,1) lds=147456",
                 "; @launch kernel=k2_kernel grid=(256,1,1) block=(256,1,1) lds=147456"]
    for i in range(o.get("empty", 0)): out.append("; @launch kernel=k3_kernel grid=(256,1,1) block=(256,1,1) lds=0")
    out += ['.amdgcn_target "amdgcn-amd-amdhsa--gfx950"', ".text"]
    ks = [("k1_kernel", k1(o)), ("k2_kernel", k2(o))]
    if o.get("empty", 0): ks.append(("k3_kernel", ["s_endpgm"]))
    for n, L in ks:
        out += [f".globl {n}", ".p2align 8", f".type {n},@function", f"{n}:"]
        out += ["    " + x if not x.endswith(":") else x for x in fix_hazards(L, verbose=o.get("verbose"))]
    out += ["CODE_END:", '.section .rodata,"a"']
    for n, L in ks: out += [".p2align 6", kd(n, 256)]
    return "\n".join(out) + "\n"

if __name__ == "__main__":
    o = {}
    path = f"cdna_kernels/{NAME}.s"
    for x in sys.argv[1:]:
        if "=" in x:
            k, v = x.split("="); o[k] = int(v)
        else: path = x
    o["verbose"] = 1
    open(path, "w").write(build(o))
    print("wrote", path)
```

```python
import re

TRANS = ("v_exp_f32", "v_log_f32", "v_rcp_f32", "v_rsq_f32", "v_sqrt_f32", "v_sin_f32", "v_cos_f32", "v_rcp_iflag_f32")
_REG = re.compile(r"^-?(?:abs\()?\|?([vsa])(?:(\d+)|\[(\d+):(\d+)\])\)?\|?$")

def regs(tok):
    tok = tok.strip()
    if tok in ("vcc",): return {"s106", "s107"}
    if tok == "vcc_lo": return {"s106"}
    if tok == "vcc_hi": return {"s107"}
    if tok == "exec": return {"exec"}
    if tok in ("exec_lo", "exec_hi"): return {"exec"}
    if tok == "m0": return {"m0"}
    m = _REG.match(tok)
    if not m: return set()
    f = m.group(1)
    if m.group(2) is not None: return {f + m.group(2)}
    return {f + str(i) for i in range(int(m.group(3)), int(m.group(4)) + 1)}

def split_ops(s):
    out, depth, cur = [], 0, ""
    for ch in s:
        if ch in "[(": depth += 1
        if ch in "])": depth -= 1
        if ch == "," and depth == 0:
            out.append(cur.strip()); cur = ""
        else: cur += ch
    if cur.strip(): out.append(cur.strip())
    return out

class Ins:
    def __init__(self, text):
        self.text = text
        t = text.split(";")[0].strip()
        self.is_label = t.endswith(":")
        self.is_dir = t.startswith(".") or t == ""
        self.mn = ""; self.w = set(); self.r = set(); self.ws = 1
        self.kind = None
        if self.is_label or self.is_dir:
            self.ws = 0; return
        p = t.split(None, 1)
        mn = p[0]; self.mn = mn
        rest = p[1] if len(p) > 1 else ""
        ops = split_ops(rest)
        mods = ""
        if ops:
            last = ops[-1].split()
            ops[-1] = last[0]; mods = " ".join(last[1:])
        self.mods = mods; self.ops = ops
        R = lambda i: regs(ops[i]) if i < len(ops) else set()
        allr = lambda a: set().union(*[R(i) for i in range(a, len(ops))]) if a < len(ops) else set()
        base = re.sub(r"_(e32|e64|dpp|sdwa)$", "", mn); self.base = base
        self.dpp = mn.endswith("_dpp") or "row_" in mods or "quad_perm" in mods
        if mn == "s_nop":
            self.kind = "nop"; self.ws = int(ops[0], 0) + 1
        elif mn.startswith("v_mfma"):
            self.kind = "mfma"; self.w = R(0); self.A = R(1); self.B = R(2); self.C = R(3); self.r = self.A | self.B | self.C
            self.passes = 8 if "32x32" in mn else 4
        elif mn.startswith("v_"):
            self.kind = "valu"
            if base.startswith("v_permlane") and "swap" in base:
                self.w = R(0) | R(1); self.r = R(0) | R(1)
            elif base.startswith("v_cmp"):
                self.w = R(0); self.r = allr(1)
                if base.startswith("v_cmpx"): self.w |= {"exec"}
            elif base in ("v_add_co_u32", "v_sub_co_u32", "v_addc_co_u32", "v_subb_co_u32"):
                self.w = R(0) | R(1); self.r = allr(2)
            else:
                self.w = R(0); self.r = allr(1)
                if base in ("v_fmac_f32", "v_dot2c_f32_bf16", "v_writelane_b32") or self.dpp: self.r |= R(0)
                if base == "v_cndmask_b32" and len(ops) == 3: self.r |= {"s106", "s107"}
            self.trans = base in TRANS
            self.dot = base.startswith("v_dot")
        elif mn.startswith("ds_"):
            self.kind = "ds"
            if mn.startswith("ds_read") or mn.startswith("ds_bpermute") or mn.startswith("ds_swizzle") or "_rtn_" in mn:
                self.w = R(0); self.r = allr(1)
            else: self.r = allr(0)
        elif mn.startswith("buffer_") or mn.startswith("global_"):
            self.kind = "vmem"
            self.lds = (" lds" in " " + mods) or "_lds_" in mn
            if mn.startswith("buffer_load") and not self.lds:
                self.w = R(0); self.r = allr(1)
            elif mn.startswith("global_load") and not self.lds:
                self.w = R(0); self.r = allr(1)
            else:
                self.r = allr(0)
                if "atomic" in mn and "sc0" in mods: self.w = R(0)
            if self.lds: self.r |= {"m0"}
            self.wide_store = ("store" in mn) and ("x4" in mn or "x3" in mn)
            self.data = R(0) if mn.startswith("buffer_store") else (R(1) if mn.startswith("global_store") else set())
        elif mn.startswith("s_"):
            self.kind = "salu"
            nodst = ("s_cmp", "s_waitcnt", "s_barrier", "s_branch", "s_cbranch", "s_endpgm", "s_setprio", "s_sleep", "s_bitcmp", "s_setpc")
            if mn.startswith(nodst): self.r = allr(0)
            else:
                self.w = R(0); self.r = allr(1)
                if "saveexec" in mn: self.w |= {"exec"}
        else:
            raise ValueError("unknown instruction: " + text)

def need(p, c):
    n = 0
    vw = {x for x in p.w if x[0] in "va" and x != "vcc"}
    sw = {x for x in p.w if x[0] == "s"}
    if p.kind == "valu":
        if c.kind == "mfma" and vw & c.r: n = max(n, 2)
        if c.kind == "valu":
            if vw & c.r:
                if p.trans and not c.trans: n = max(n, 1)
                if c.dpp: n = max(n, 2)
                if c.base.startswith("v_permlane"): n = max(n, 2)
                if c.base in ("v_readlane_b32", "v_readfirstlane_b32"): n = max(n, 1)
            if p.dot and (vw & (c.r | c.w)):
                same_c = c.dot and c.base == p.base and not (vw & (regs(c.ops[1]) | regs(c.ops[2])))
                if not same_c: n = max(n, 3)
            if sw & c.r: n = max(n, 4 if c.base in ("v_readlane_b32", "v_writelane_b32") else 2)
            if "exec" in p.w: n = max(n, 5 if c.dpp else 4)
        if p.dot and c.kind in ("mfma", "ds", "vmem") and vw & (c.r | c.w): n = max(n, 3)
        if c.kind == "vmem" and sw & c.r: n = max(n, 5)
        if c.kind == "mfma" and "exec" in p.w: n = max(n, 4)
        if p.trans and c.kind in ("ds", "vmem") and vw & c.r: n = max(n, 1)
    if p.kind == "salu" and "m0" in p.w and c.kind == "vmem" and getattr(c, "lds", False): n = max(n, 1)
    if p.kind == "mfma":
        big = {4: 8, 8: 12}[p.passes]
        if c.kind == "mfma":
            if p.w & (c.A | c.B): n = max(n, big)
            if p.w & c.C:
                if not (p.w == c.C and p.passes == c.passes): n = max(n, {4: 6, 8: 10}[p.passes])
        elif c.kind in ("valu", "ds", "vmem"):
            if p.w & (c.r | c.w): n = max(n, big)
            if c.kind == "valu" and p.C & c.w: n = max(n, {4: 3, 8: 7}[p.passes])
    if p.kind == "vmem" and getattr(p, "wide_store", False) and p.data & c.w:
        n = max(n, 2 if c.kind == "valu" else 1)
    return n

def fix_hazards(lines, verbose=False):
    out, hist, added = [], [], 0
    for text in lines:
        c = Ins(text)
        if c.ws == 0:
            out.append(text); continue
        if c.kind != "nop":
            dist, pad = 0, 0
            for p in reversed(hist):
                if dist >= 20: break
                if p.kind != "nop":
                    pad = max(pad, need(p, c) - dist)
                dist += p.ws
            if pad > 0:
                added += pad
                while pad > 0:
                    k = min(pad, 16)
                    nop = Ins(f"s_nop {k-1}")
                    out.append(nop.text); hist.append(nop); pad -= k
        out.append(text); hist.append(c)
        if len(hist) > 40: hist = hist[-40:]
    if verbose: print("hazard nops added:", added)
    return out

class Asm:
    def __init__(self): self.L = []
    def __call__(self, *texts):
        for t in texts:
            for x in t.split("\n"):
                x = x.strip()
                if x: self.L.append(x)
    def lines(self): return self.L

def vr(a, n=1): return f"v{a}" if n == 1 else f"v[{a}:{a+n-1}]"
def sr(a, n=1): return f"s{a}" if n == 1 else f"s[{a}:{a+n-1}]"

def interleave(main, fill, start=0, per=1):
    out = []; fi = 0
    for i, m in enumerate(main):
        out.append(m)
        if i >= start:
            for _ in range(per):
                if fi < len(fill):
                    out.extend(fill[fi]); fi += 1
    while fi < len(fill):
        out.extend(fill[fi]); fi += 1
    return out

def _cost(i):
    if i.kind == "mfma": return 8
    if i.kind == "valu" and (i.trans or i.base.startswith("v_permlane")): return 8
    return 4
def _lat(p, c):
    n = need(p, c)
    base = _cost(p) + 4*n
    if p.kind == "mfma" and (p.w & (c.r | c.w)):
        if c.kind == "mfma" and p.w == c.C and not (p.w & (c.A | c.B)): base = max(base, 4*p.passes)
        else: base = max(base, 4*p.passes + 24)
    if p.kind == "valu" and p.trans and (p.w & c.r): base = max(base, 12)
    return base

def schedule(lines, pre=(), keep_order=lambda t: False):
    ins = [Ins(t) for t in lines]
    n = len(ins)
    for i in ins: assert i.kind in ("valu", "mfma", "ds", "salu", "vmem"), i.text
    succ = [[] for _ in range(n)]; npred = [0]*n
    scc = lambda i: i.kind == "salu"
    for j in range(n):
        for i in range(j):
            a, b = ins[i], ins[j]
            dep = (a.w & (b.r | b.w)) or (a.r & b.w) or (scc(a) and scc(b)) or (a.kind == "vmem" and b.kind == "vmem") \
                  or (keep_order(a.text) and keep_order(b.text)) or ("exec" in a.w) or ("exec" in b.w)
            if dep:
                raw = a.w & (b.r | b.w) or (a.kind == "mfma" and a.C & b.w)
                succ[i].append((j, _lat(a, b) if raw else _cost(a))); npred[j] += 1
    prio = [0]*n
    for i in range(n-1, -1, -1):
        prio[i] = max([l + prio[j] for j, l in succ[i]] + [_cost(ins[i])])
    ready_at = [0]*n
    t0 = -4*len(pre)
    for k, p in enumerate(pre):
        p = Ins(p)
        if p.ws == 0 or p.kind == "nop": continue
        for j in range(n):
            if p.w & (ins[j].r | ins[j].w): ready_at[j] = max(ready_at[j], t0 + 4*k + _lat(p, ins[j]))
    avail = [i for i in range(n) if npred[i] == 0]
    t, mf_free, out = 0, 0, []
    while avail:
        def start(i): return max(t, ready_at[i], mf_free if ins[i].kind == "mfma" else 0)
        now = [i for i in avail if start(i) <= t]
        pick = max(now, key=lambda i: (prio[i], -i)) if now else min(avail, key=lambda i: (start(i), -prio[i]))
        t = start(pick)
        out.append(lines[pick]); avail.remove(pick)
        if ins[pick].kind == "mfma": mf_free = t + 4*ins[pick].passes
        for j, l in succ[pick]:
            ready_at[j] = max(ready_at[j], t + l); npred[j] -= 1
            if npred[j] == 0: avail.append(j)
        t += _cost(ins[pick])
    assert len(out) == n
    schedule.last_cycles = t
    return out
```

```python
import sys
sys.path.insert(0, "work")
from asmlib import *

NAME = "gated_mix__spectral_fnet__sliding_local_dilated__prompt"
KN = NAME + "_kernel"
WS_O, WS_V, WS_G, WS_FL, WS_ST = 0, 0x200000, 0x440000, 0x450000, 0x460000
VP = 4224
WS_SIZE = 0x4C0000
NEG = 0xF149F2CA
SCL = 0x3EB8AA3B
LDS = 163840
L_O, L_WO, L_V, L_STG = 0, 81920, 147456, 12288

P_X, P_SRE, P_SIM, P_HRE, P_HIM, P_BX, P_WQ, P_WO, P_GW, P_OUT, P_DBG, P_WS = range(16, 40, 2)
R_X, R_WQ, R_HRE, R_HIM, R_GW, R_WS, R_CODE, R_WO, R_OUT = range(40, 76, 4)
R_DBG = R_CODE

def srd(a, r, p, size, delta=0):
    if delta: a(f"s_sub_u32 s{r}, s{p}, {delta}", f"s_subb_u32 s{r+1}, s{p+1}, 0")
    else: a(f"s_mov_b64 {sr(r,2)}, {sr(p,2)}")
    a(f"s_mov_b32 s{r+2}, {size+delta}", f"s_mov_b32 s{r+3}, 0x20000")

def mfma16(d, x, y, c): return f"v_mfma_f32_16x16x32_bf16 {vr(d,4)}, {vr(x,4)}, {vr(y,4)}, {c if isinstance(c,str) else vr(c,4)}"
def mfma32(d, x, y, c): return f"v_mfma_f32_32x32x16_bf16 {vr(d,16)}, {vr(x,4)}, {vr(y,4)}, {c if isinstance(c,str) else vr(c,16)}"
def cvt(d, x, y): return f"v_cvt_pk_bf16_f32 v{d}, v{x}, v{y}"

def kernel(o):
    a = Asm()
    SC1 = " sc1"
    def stamp(k, rt=None):
        if not o.get("stamp"): return
        a("s_memtime s[96:97]")
        if rt is not None: a("s_memrealtime s[98:99]")
        a("s_waitcnt lgkmcnt(0)", f"v_writelane_b32 v255, s96, {k}")
        if rt is not None: a(f"v_writelane_b32 v255, s98, {rt}")
    def stamps_out(k):
        if not o.get("stamp"): return
        a("s_waitcnt vmcnt(0)"); stamp(k, 31)
        a("s_lshl_b32 s96, s2, 3", "s_add_u32 s96, s96, s3", "s_lshl_b32 s96, s96, 7", f"s_add_u32 s96, s96, {WS_ST}",
          "v_lshlrev_b32 v254, 2, v1", "s_mov_b32 exec_hi, 0", f"buffer_store_dword v255, v254, {sr(R_WS,4)}, s96 offen")
    slot = lambda c: (c + 1) % 4

    stamp(0, 30)
    a("s_load_dwordx16 s[16:31], s[0:1], 0", "s_load_dwordx8 s[32:39], s[0:1], 64")
    a(f"s_getpc_b64 {sr(R_CODE,2)}", "K_PC:")
    a("v_lshrrev_b32 v15, 6, v0", "v_and_b32 v1, 63, v0")
    a("s_cmp_ge_u32 s2, 256", "s_cbranch_scc1 K_END")
    a("v_readfirstlane_b32 s3, v15")
    a(f"s_mov_b32 s{R_CODE+2}, CODE_END-K_PC", f"s_mov_b32 s{R_CODE+3}, 0x20000")
    a("s_and_b32 s4, s2, 7", "s_lshr_b32 s5, s2, 3", "v_mov_b32 v2, 0")
    a("s_lshl_b32 s6, s5, 3", "s_add_u32 s6, s6, s3", "s_lshl_b32 s7, s6, 7")
    if o.get("codepf", 1): a(f"buffer_load_dword v252, v2, {sr(R_CODE,4)}, s7 offen")
    a("s_lshl_b32 s8, s4, 5", "s_add_u32 s8, s8, s5", "s_mul_i32 s9, s8, 171", "s_lshr_b32 s9, s9, 10", "s_mul_i32 s10, s9, 6", "s_sub_u32 s10, s8, s10",
      "s_cmp_ge_u32 s10, 3", "s_addc_u32 s10, s10, 1", "s_lshl_b32 s9, s9, 3", "s_add_u32 s9, s9, s10")
    a("s_lshl_b32 s10, s5, 3", "s_lshl_b32 s11, s4, 2", "s_add_u32 s10, s10, s11", "s_sub_u32 s10, s10, 24")
    a("s_lshr_b32 s11, s4, 1", "s_lshl_b32 s12, s11, 19", "s_lshl_b32 s13, s6, 11", "s_add_u32 s12, s12, s13", "s_and_b32 s13, s4, 1", "s_lshl_b32 s14, s13, 9", "s_add_u32 s12, s12, s14",
      "s_lshl_b32 s14, s6, 10")
    a("s_cmp_ge_u32 s4, 6", "s_cselect_b32 s9, s10, s9", "s_cselect_b32 s93, s14, s12", "s_cselect_b32 s12, 9, 10")
    a("s_lshl_b32 s9, s9, 3", "s_add_u32 s92, s9, s3", "s_lshl_b32 s7, s92, 10")
    a("v_lshrrev_b32 v16, 3, v1", "v_and_b32 v17, 7, v1", "v_lshlrev_b32 v19, 4, v1")
    a("v_lshrrev_b32 v3, 5, v1", "v_lshlrev_b32 v3, s12, v3", "v_and_b32 v4, 3, v16", "v_lshl_add_u32 v20, v4, 7, v3")
    a("v_lshrrev_b32 v18, 1, v16", "v_xor_b32 v18, v17, v18", "v_lshlrev_b32 v18, 4, v18")
    a("s_lshr_b32 s9, s5, 2", "s_lshl_b32 s8, s11, 3", "s_add_u32 s8, s8, s9", "s_and_b32 s11, s5, 3", "s_lshl_b32 s10, s13, 2", "s_add_u32 s10, s10, s11")
    a("s_lshr_b32 s12, s8, 1", "s_mul_i32 s12, s12, 85", "s_and_b32 s13, s8, 1", "s_lshl_b32 s14, s12, 1", "s_add_u32 s14, s14, s13", "s_lshl_b32 s14, s14, 10")
    a("s_and_b32 s15, s3, 3")
    a("s_mul_i32 s76, s15, 49152", "s_add_u32 s77, s76, s14", "s_and_b32 s78, s15, 1", "s_lshl_b32 s78, s78, 6")
    a("v_xor_b32 v2, s78, v18", "v_lshl_add_u32 v2, v16, 11, v2", "v_add_u32 v2, s77, v2")
    a("s_movk_i32 s77, 15360", "v_xad_u32 v3, v2, 64, s77", "v_add_u32 v4, 30720, v2")
    a("s_lshl_b32 s77, s10, 7", "s_add_u32 s76, s76, s77")
    wcalc = []
    for j in range(3):
        wcalc += [f"v_add_u32 v22, {8*j}, v16", "v_mul_u32_u24 v23, 43, v22", "v_lshrrev_b32 v24, 7, v23", "v_and_b32 v24, 2, v24",
          "v_lshrrev_b32 v23, 8, v23", "v_and_or_b32 v23, v23, 4, v24", "v_xor_b32 v23, v23, v17",
          "v_lshlrev_b32 v23, 4, v23", f"v_subrev_u32 v22, {j}, v22", "v_lshl_add_u32 v23, v22, 10, v23", f"v_add_u32 v{5+j}, s76, v23"]
    wcalc += ["s_movk_i32 s77, 24576"] + [f"v_xad_u32 v{8+j}, v{5+j}, 64, s77" for j in range(3)]
    if o.get("wearly", 0): a(*wcalc)
    a("s_waitcnt lgkmcnt(0)")
    srd(a, R_X, P_X, 2048*1024)
    a(f"buffer_load_dwordx4 v[244:247], v19, {sr(R_X,4)}, s7 offen")
    a("s_cmp_eq_u32 s4, 6", f"s_cselect_b64 {sr(R_WQ,2)}, {sr(P_HRE,2)}, {sr(P_HIM,2)}", "s_mov_b32 s77, 0x180000",
      "s_cmp_ge_u32 s4, 6", f"s_cselect_b64 {sr(R_WQ,2)}, {sr(R_WQ,2)}, {sr(P_WQ,2)}", f"s_cselect_b32 s{R_WQ+2}, 0x80000, s77", f"s_mov_b32 s{R_WQ+3}, 0x20000")
    if o.get("touch", 1): a(f"buffer_load_dword v252, v20, {sr(R_WQ,4)}, s93 offen")
    srd(a, R_GW, P_GW, 1024)
    a(f"buffer_load_dwordx4 v[248:251], v19, {sr(R_GW,4)}, 0 offen")
    a("s_cmp_lt_u32 s3, 4", "s_cbranch_scc1 K_COMP")
    a("s_cmp_ge_u32 s4, 6", "s_cbranch_scc1 K_SLOAD")

    def rot(r):
        if r == 0: a("s_mov_b32 s76, 0")
        elif r == 1: a("s_lshl_b32 s76, s11, 8")
        elif r == 2: a("s_lshl_b32 s76, s11, 1", "s_add_u32 s76, s76, s9", "s_and_b32 s76, s76, 7", "s_lshl_b32 s76, s76, 7")
    def gate():
        a("v_mov_b32 v253, 0")
        for i in range(4): a(f"v_dot2c_f32_bf16 v253, v{244+i}, v{248+i}")
        for sh in (1, 2, 4, 8): a(f"v_add_f32_dpp v253, v253, v253 row_shr:{sh} row_mask:0xf bank_mask:0xf bound_ctrl:1")
        a("v_add_f32_dpp v253, v253, v253 row_bcast:15 row_mask:0xa bank_mask:0xf", "v_add_f32_dpp v253, v253, v253 row_bcast:31 row_mask:0xc bank_mask:0xf")
        a("s_lshl_b32 s90, s92, 2", f"s_add_u32 s90, s90, {WS_G}", "v_cmp_eq_u32 vcc, 63, v1", "v_mov_b32 v244, 0x80000000")
        a("v_mul_f32 v253, 0xbfb8aa3b, v253", "v_exp_f32 v253, v253", "v_cndmask_b32_e64 v244, v244, 0, vcc", "v_add_f32 v253, 1.0, v253", "v_rcp_f32 v253, v253")
        a(f"buffer_store_dword v253, v244, {sr(R_WS,4)}, s90 offen{SC1}")
    def loop_tail(n, lab):
        a("s_add_u32 s80, s80, 1", "s_cmp_eq_u32 s80, 1", f"s_cbranch_scc1 {lab}")
        a(f"s_waitcnt vmcnt({n})", "s_barrier")
        if o.get("stamp"): a("s_memtime s[96:97]", "s_waitcnt lgkmcnt(0)", "s_mov_b32 m0, s80", "s_nop 0", "v_writelane_b32 v255, s96, m0")
        a("s_cmp_lt_u32 s80, 8", f"s_cbranch_scc1 {lab}")
        a("s_waitcnt vmcnt(0)", "s_barrier"); stamp(9)

    if not o.get("wearly", 0): a(*wcalc)
    rot(o.get("rotq", 0))
    a("s_mul_i32 s78, s15, 3072", "s_add_u32 s81, s78, 49152", "s_lshl_b32 s79, s78, 1", "s_add_u32 s78, s78, 12288", f"s_add_u32 s79, s79, {49152+24576}", "s_mov_b32 s80, 0")
    stamp(1)
    a("K_QL:")
    a("s_mov_b32 m0, s78", "s_mul_i32 s77, s76, 1536")
    for j in range(3): a(f"buffer_load_dwordx4 v{2+j}, {sr(R_X,4)}, s76 offen" + (f" offset:{1024*j}" if j else "") + " lds")
    a("s_mov_b32 m0, s79", "s_add_u32 s76, s76, 128")
    for j in range(3): a(f"buffer_load_dwordx4 v{5+j}, {sr(R_WQ,4)}, s77 offen" + (f" offset:{1024*j}" if j else "") + " lds")
    a("s_add_u32 m0, s79, 3072", "s_and_b32 s76, s76, 0x3ff")
    for j in range(3): a(f"buffer_load_dwordx4 v{8+j}, {sr(R_WQ,4)}, s77 offen" + (f" offset:{1024*j}" if j else "") + " lds")
    a("s_add_u32 s78, s78, 12288", "s_add_u32 s79, s79, 24576", "s_cmp_eq_u32 s78, s81", "s_cselect_b32 s83, 49152, 0", "s_sub_u32 s78, s78, s83", "s_lshl_b32 s83, s83, 1", "s_sub_u32 s79, s79, s83")
    loop_tail(9, "K_QL")
    a("s_branch K_P2L")
    a("K_SLOAD:")
    def s_ids():
        a("s_sub_u32 s8, s4, 6", "s_lshl_b32 s8, s8, 3", "s_add_u32 s8, s8, s9")
        a("s_lshl_b32 s10, s11, 6", "s_lshl_b32 s77, s15, 4", "s_add_u32 s10, s10, s77")
    s_ids(); rot(o.get("rots", 0))
    a("s_lshl_b32 s77, s8, 2", "s_add_u32 s77, s77, s15", "s_lshl_b32 s77, s77, 10")
    a("v_lshl_add_u32 v2, v16, 16, v18", "v_add_u32 v2, s77, v2")
    a(f"s_mov_b32 s77, {8*65536-1024}", "v_xad_u32 v3, v2, 64, s77", f"v_add_u32 v4, {2*(8*65536-1024)}, v2", f"v_add_u32 v5, {2*(8*65536-1024)}, v3")
    a("s_lshl_b32 s77, s10, 10")
    a("v_lshl_add_u32 v6, v16, 10, v18", "v_add_u32 v6, s77, v6", "s_movk_i32 s77, 7168", "v_xad_u32 v7, v6, 64, s77")
    a("s_lshl_b32 s78, s15, 12", "s_add_u32 s81, s78, 65536")
    a("s_cmp_eq_u32 s10, 0", "s_cselect_b32 s12, 0xffffff00, -1")
    a("v_mov_b32 v22, 0xbf803f80", "v_mov_b32 v23, v22", "v_mov_b32 v24, v22", "v_mov_b32 v25, v22")
    a("v_lshlrev_b32 v26, 14, v16", "v_lshl_add_u32 v26, v17, 4, v26", "v_and_b32 v26, 0xffff, v26", "v_add_u32 v26, s81, v26")
    a("ds_write_b128 v26, v[22:25] offset:2048")
    srd(a, R_HRE, P_HRE, 512*1024); srd(a, R_HIM, P_HIM, 512*1024, delta=2048)
    a("s_add_u32 s78, s78, 16384", "s_mov_b32 s80, 0", "s_waitcnt lgkmcnt(0)")
    stamp(1)
    a("K_SL:")
    a("s_mov_b32 m0, s78", "s_add_u32 s79, s78, 65536")
    for j in range(4): a(f"buffer_load_dwordx4 v{2+j}, {sr(R_X,4)}, s76 offen" + (f" offset:{1024*j}" if j else "") + " lds")
    a("s_mov_b32 m0, s79", "s_add_u32 s78, s78, 16384")
    a(f"buffer_load_dwordx4 v6, {sr(R_HRE,4)}, s76 offen lds", f"buffer_load_dwordx4 v7, {sr(R_HRE,4)}, s76 offen offset:1024 lds")
    a("s_mov_b32 exec_lo, s12", f"buffer_load_dwordx4 v6, {sr(R_HIM,4)}, s76 offen offset:2048 lds", "s_mov_b32 exec_lo, -1")
    a(f"buffer_load_dwordx4 v7, {sr(R_HIM,4)}, s76 offen offset:3072 lds")
    a("s_add_u32 s76, s76, 128", "s_and_b32 s76, s76, 0x3ff", "s_and_b32 s78, s78, 0xffff")
    loop_tail(8, "K_SL")

    def p2_ids():
        a("s_and_b32 s6, s5, 7", "s_lshr_b32 s7, s5, 3")
        a("s_lshl_b32 s8, s4, 1", "s_lshr_b32 s9, s7, 1", "s_add_u32 s8, s8, s9")
        a("s_sub_u32 s9, 32, s8", "s_cmp_eq_u32 s8, 0", "s_cselect_b32 s9, 16, s9", "s_bitcmp1_b32 s7, 0", "s_cselect_b32 s8, s9, s8")
    a("K_P2L:")
    p2_ids()
    srd(a, R_WO, P_WO, 512*1024)
    a("v_and_b32 v5, 2, v16", "v_lshlrev_b32 v5, 1, v5", "v_xor_b32 v5, v5, v17", "v_lshlrev_b32 v5, 4, v5", "v_lshl_add_u32 v5, v16, 10, v5")
    a("s_lshl_b32 s76, s15, 14", "s_lshl_b32 s77, s6, 7", "s_add_u32 s76, s76, s77", "v_add_u32 v5, s76, v5", "v_add_u32 v6, 7168, v5")
    a("s_lshl_b32 s78, s15, 11")
    for c in range(8):
        a(f"s_add_u32 m0, s78, {L_WO + c*8192}", f"s_mov_b32 s76, {c*65536}",
          f"buffer_load_dwordx4 v5, {sr(R_WO,4)}, s76 offen lds", f"buffer_load_dwordx4 v6, {sr(R_WO,4)}, s76 offen offset:1024 lds")
    srd(a, R_DBG, P_DBG, 256); srd(a, R_WS, P_WS, WS_SIZE)
    a("v_mov_b32 v21, 0", f"buffer_load_dword v20, v21, {sr(R_DBG,4)}, 0 offen{SC1}")
    stamp(10)
    gate()
    a("s_sub_u32 s9, 32, s8", "s_and_b32 s9, s9, 31", "s_cmp_ge_u32 s6, 4", "s_cselect_b32 s9, s9, s8")
    a("s_cselect_b32 s10, -16, 16", "s_lshl_b32 s11, s6, 10", "s_sub_u32 s12, 8192, s11", "s_cmp_ge_u32 s6, 4", "s_cselect_b32 s11, s12, s11")
    a(f"s_mul_i32 s14, s9, {16*VP}", "s_add_u32 s14, s14, s11", f"s_mul_i32 s76, s15, {4*VP}", "s_add_u32 s14, s14, s76", f"s_add_u32 s14, s14, {WS_V}")
    a("v_mul_i32_i24 v2, s10, v1", "v_add_u32 v2, s14, v2")
    a("s_lshl_b32 s76, s15, 19", "s_lshl_b32 s77, s8, 10", "s_add_u32 s76, s76, s77", f"s_add_u32 s76, s76, {WS_O}")
    a("v_lshl_add_u32 v3, v16, 15, v18", "v_add_u32 v3, s76, v3", f"s_mov_b32 s77, {8*32768-1024}", "v_xad_u32 v4, v3, 64, s77")
    a("v_lshrrev_b32 v23, 1, v1", "v_and_b32 v22, 1, v1", "v_lshlrev_b32 v22, 4, v22", "v_lshl_add_u32 v23, v23, 7, v22", f"s_mov_b32 s82, {WS_FL}")
    a("s_lshl_b32 s83, s5, 7", "s_lshl_b32 s84, s4, 2", "s_add_u32 s83, s83, s84", "s_add_u32 s83, s83, s82", "v_mov_b32 v22, 1", "s_movk_i32 s84, 20000")
    a("s_waitcnt vmcnt(0)")
    a("K_GO:", "v_readfirstlane_b32 s90, v20", "s_sub_u32 s84, s84, 1", "s_cselect_b32 s90, 1, s90", "s_cmp_lg_u32 s90, 0", "s_cbranch_scc1 K_GOK",
      f"buffer_load_dword v20, v21, {sr(R_DBG,4)}, 0 offen{SC1}", "s_waitcnt vmcnt(0)", "s_branch K_GO", "K_GOK:")
    a("s_cmp_ge_u32 s4, 6", "s_cbranch_scc1 K_NOSTG", "s_barrier", "K_NOSTG:")
    stamp(11)
    a("s_barrier")
    a("s_cmp_lg_u32 s15, 1", "s_cbranch_scc1 K_NOFLAG")
    a("s_mov_b64 exec, 1", f"buffer_store_dword v22, v21, {sr(R_WS,4)}, s83 offen{SC1}", "s_mov_b64 exec, -1")
    a("K_NOFLAG:", "s_cmp_lg_u32 s15, 0", "s_cbranch_scc1 K_POLLED", "s_movk_i32 s84, 20000")
    a("K_POLL:", f"buffer_load_dwordx4 v[24:27], v23, {sr(R_WS,4)}, s82 offen{SC1}", "s_sub_u32 s84, s84, 1", "s_cbranch_scc1 K_POLLED", "s_waitcnt vmcnt(0)",
      "v_and_b32 v24, v24, v25", "v_and_b32 v26, v26, v27", "v_and_b32 v24, v24, v26", "v_cmp_eq_u32 vcc, 1, v24", "s_cmp_eq_u64 vcc, -1")
    if o.get("psleep", 0): a("s_cbranch_scc1 K_POLLED", f"s_sleep {o['psleep']}", "s_branch K_POLL")
    else: a("s_cbranch_scc0 K_POLL")
    a("K_POLLED:")
    a("s_lshl_b32 s79, s15, 12", f"s_add_u32 m0, s79, {L_V}", "s_mov_b32 s76, 0")
    stamp(12)
    a("s_barrier")
    G = [[([f"s_movk_i32 s76, {j*(VP-1024)}"] if j else []) + [f"buffer_load_dwordx4 v2, {sr(R_WS,4)}, s76 offen" + (f" offset:{1024*j}" if j else "") + f"{SC1} lds"] for j in range(4)]]
    for c in range(8):
        G.append([[f"s_add_u32 m0, s78, {L_O + c*8192}", f"s_movk_i32 s76, {c*128}", f"buffer_load_dwordx4 v3, {sr(R_WS,4)}, s76 offen{SC1} lds"],
                  [f"buffer_load_dwordx4 v4, {sr(R_WS,4)}, s76 offen offset:1024{SC1} lds"]])
    flat = [(gi, ins) for gi, g in enumerate(G) for ins in g]
    last = {gi: i for i, (gi, _) in enumerate(flat)}
    nxt, lag = 0, o.get("lag2", 8)
    for i, (gi, ins) in enumerate(flat):
        a(*ins)
        while nxt < len(G) and i - last[nxt] >= lag:
            a(f"s_waitcnt vmcnt({i - last[nxt]})", "s_barrier"); nxt += 1
    stamp(14)
    for k in range(nxt, len(G)): a(f"s_waitcnt vmcnt({len(flat)-1-last[k]})", "s_barrier")
    stamps_out(15)
    a("s_endpgm")

    a("K_COMP:")
    srd(a, R_WS, P_WS, WS_SIZE)
    a("v_and_b32 v20, 15, v1", "v_lshrrev_b32 v21, 4, v1")
    a("v_lshrrev_b32 v11, 1, v20", "v_xor_b32 v11, v21, v11", "v_lshlrev_b32 v11, 4, v11", "v_lshl_or_b32 v11, v20, 7, v11")
    a("v_xor_b32 v12, 64, v11")
    a("s_cmp_ge_u32 s4, 6", "s_cbranch_scc1 K_SPEC")
    def mainloop(reads, mfmas):
        stamp(1)
        a(".p2align 3", "s_barrier", "s_nop 0")
        stamp(2)
        for g_ in reads(0): a(*g_)
        for s in range(15):
            c, ks = s // 2, s % 2
            a("s_waitcnt lgkmcnt(0)", "s_barrier" if ks == 1 else "s_nop 0")
            a(*interleave(mfmas(s), reads(s+1)))
        a("s_waitcnt lgkmcnt(0)", "s_nop 0")
        stamp(3)

    a("s_or_b32 s76, s2, s3", "s_cmp_lg_u32 s76, 0", "s_cbranch_scc1 K_NOZERO")
    srd(a, R_DBG, P_DBG, 256)
    a("v_lshrrev_b32 v23, 1, v1", "v_and_b32 v22, 1, v1", "v_lshlrev_b32 v22, 4, v22", "v_lshl_add_u32 v23, v23, 7, v22", f"s_mov_b32 s82, {WS_FL}")
    for i in range(4): a(f"v_mov_b32 v{24+i}, 0")
    a(f"buffer_store_dwordx4 v[24:27], v23, {sr(R_WS,4)}, s82 offen{SC1}", "v_mov_b32 v22, 1", "s_waitcnt vmcnt(0)",
      "s_mov_b64 exec, 1", f"buffer_store_dword v22, v24, {sr(R_DBG,4)}, 0 offen{SC1}", "s_mov_b64 exec, -1")
    a("K_NOZERO:")
    a("v_lshrrev_b32 v22, 2, v20", "v_lshl_add_u32 v22, v21, 3, v22", "v_mul_u32_u24 v22, 384, v22")
    a("v_lshrrev_b32 v23, 3, v20", "v_and_b32 v24, 1, v21", "v_lshl_or_b32 v23, v24, 1, v23", "v_xor_b32 v23, s3, v23")
    a("v_lshl_add_u32 v22, v23, 5, v22", "v_and_b32 v23, 3, v20", "v_lshl_add_u32 v22, v23, 3, v22")
    a("v_add_u32 v13, 49152, v22", "v_add_u32 v14, 98304, v22")
    MC, MP, SM, ONES = 160, 164, 168, 172
    a("v_lshlrev_b32 v22, 2, v21", "v_sub_u32 v22, v20, v22", f"v_mov_b32 v24, {NEG:#x}", "v_mov_b32 v25, 0")
    for r in range(4):
        a(f"v_subrev_u32 v23, {r}, v22", "v_cmp_gt_u32 vcc, 8, v23", "v_cmp_gt_i32 s[76:77], -8, v23", f"v_mov_b32 v{ONES+r}, 0x3f803f80",
          f"v_cndmask_b32 v{MC+r}, v24, v25, vcc", f"v_cndmask_b32 v{MP+r}, v24, v25, s[76:77]")
    a("v_mov_b32 v26, 0xffff", "v_mov_b32 v27, 0xffff0000")
    for h in range(2):
        a(f"v_cmp_le_i32 vcc, {2*h}, v22", f"v_cmp_le_i32 s[76:77], {2*h+1}, v22", "s_nop 0", "v_cndmask_b32 v28, v25, v26, vcc", "v_cndmask_b32 v29, v25, v27, s[76:77]",
          f"v_or_b32 v{SM+h}, v28, v29")
    a("v_lshrrev_b32 v22, 1, v21", "s_lshl_b32 s76, s3, 1", "v_add_u32 v22, s76, v22", "v_and_b32 v23, 7, v20", "v_xor_b32 v22, v22, v23",
      "v_lshlrev_b32 v22, 4, v22", "v_lshl_or_b32 v22, v20, 7, v22", "v_and_b32 v23, 1, v21", "v_lshl_or_b32 v176, v23, 3, v22")
    a("s_mul_i32 s76, s3, 3072", "v_add_u32 v177, s76, v19")
    a("v_xor_b32 v22, v17, v16", "v_lshlrev_b32 v22, 4, v22", "s_lshl_b32 s76, s10, 7", "s_add_u32 s76, s76, s14", f"s_add_u32 s76, s76, {WS_O}", "v_add_u32 v22, s76, v22")
    a("s_cmp_eq_u32 s12, 0", "s_cselect_b32 s77, 0, 11", "s_sub_u32 s78, 1024, s12", "s_sub_u32 s78, s78, s77", "s_mul_i32 s76, s3, 24", "v_mov_b32 v24, 0x80000000")
    for j in range(3):
        a(f"v_add_u32 v23, s76, v16", *( [f"v_add_u32 v23, {8*j}, v23"] if j else []),
          "v_lshl_add_u32 v26, v23, 11, v22", "v_subrev_u32 v23, s77, v23", "v_cmp_gt_u32 vcc, s78, v23", f"v_cndmask_b32 v{178+j}, v24, v26, vcc")
    a(f"s_mov_b32 s94, {SCL:#x}", f"s_mov_b32 s95, {SCL:#x}")
    a("s_waitcnt vmcnt(0)"); gate()
    XA = lambda s, b: 16 + 24*(s % 2) + 4*b
    WB = lambda s, sg: 64 + 12*(s % 2) + 4*sg
    ACC = lambda b, sg: 88 + 12*b + 4*sg
    def q_reads(s):
        c, ks = s // 2, s % 2; st = slot(c); L = []
        wb = 13 if st < 2 else 14
        for sg in range(3):
            for sub in range(2):
                L.append([f"ds_read_b64_tr_b16 {vr(WB(s,sg)+2*sub,2)}, v{wb} offset:{(st%2)*24576 + (32*ks+4*sub)*384 + sg*128}"])
        X = [[f"ds_read_b128 {vr(XA(s,b),4)}, v{11+ks} offset:{st*12288 + b*2048}"] for b in range(6)]
        return L[:2] + X[:1] + L[2:] + X[1:]
    def q_mfmas(s):
        L = []
        for b in range(6):
            for sg in range(3):
                c_ = "0" if s == 0 else ACC(b, sg)
                if sg < 2: L.append(mfma16(ACC(b,sg), WB(s,sg), XA(s,b), c_))
                else: L.append(mfma16(ACC(b,sg), XA(s,b), WB(s,sg), c_))
        return L
    mainloop(q_reads, q_mfmas)
    QB = lambda b: 16 + 2*b
    KB = lambda b: 28 + 2*b
    VB = lambda b: 64 + 2*b
    MX = lambda b: 208 + 2*b
    PP = lambda b: 184 + 4*b
    SC = lambda b: ACC(b, 0)
    SP = lambda b: ACC(b, 1)
    OO = lambda b: ACC(b, 2)
    t = Asm()
    t(*q_mfmas(15))
    for b in range(6):
        for sg, f in ((1, KB), (0, QB), (2, VB)):
            t(cvt(f(b), ACC(b,sg), ACC(b,sg)+1), cvt(f(b)+1, ACC(b,sg)+2, ACC(b,sg)+3))
    for b in range(6):
        t(f"v_mfma_f32_16x16x16_bf16 {vr(SC(b),4)}, {vr(KB(b),2)}, {vr(QB(b),2)}, {vr(MC,4)}")
        if b: t(f"v_mfma_f32_16x16x16_bf16 {vr(SP(b),4)}, {vr(KB(b-1),2)}, {vr(QB(b),2)}, {vr(MP,4)}")
    for b in range(6):
        if b:
            for r in range(4): t(f"v_max_f32 v{SC(b)+r}, v{SC(b)+r}, v{SP(b)+r}")
        t(f"v_max3_f32 v{MX(b)}, v{SC(b)}, v{SC(b)+1}, v{SC(b)+2}", f"v_max_f32 v{MX(b)}, v{MX(b)}, v{SC(b)+3}")
    for x, y in [(0, 1), (2, 3), (4, 5)]:
        t(f"v_permlane32_swap_b32 v{MX(x)}, v{MX(y)}", f"v_max_f32 v{MX(x)}, v{MX(x)}, v{MX(y)}", f"v_mov_b32 v{MX(y)}, v{MX(x)}",
          f"v_permlane16_swap_b32 v{MX(x)}, v{MX(y)}", f"v_max_f32 v{MX(x)}, v{MX(x)}, v{MX(y)}", f"v_mul_f32 v{MX(x)}, s94, v{MX(x)}",
          f"v_mov_b32 v{MX(y)}, v{MX(x)}", f"v_permlane32_swap_b32 v{MX(x)}, v{MX(y)}")
    for b in range(6):
        for r in (0, 2): t(f"v_pk_fma_f32 {vr(SC(b)+r,2)}, {vr(SC(b)+r,2)}, s[94:95], {vr(MX(b),2)} op_sel_hi:[1,1,0] neg_lo:[0,0,1] neg_hi:[0,0,1]")
        for r in range(4): t(f"v_exp_f32 v{SC(b)+r}, v{SC(b)+r}")
        if b == 0:
            t(cvt(PP(0), SC(0), SC(0)+1), cvt(PP(0)+1, SC(0)+2, SC(0)+3), f"v_mov_b32 v{PP(0)+2}, 0", f"v_mov_b32 v{PP(0)+3}, 0")
        else:
            t(cvt(PP(b), SC(b), SC(b)+1), cvt(PP(b)+1, SC(b)+2, SC(b)+3))
            t(f"v_and_b32 v{PP(b)+2}, v{PP(b)}, v{SM}", f"v_and_b32 v{PP(b)+3}, v{PP(b)+1}, v{SM+1}")
            t(f"v_xor_b32 v{PP(b)}, v{PP(b)}, v{PP(b)+2}", f"v_xor_b32 v{PP(b)+1}, v{PP(b)+1}, v{PP(b)+3}")
        t(mfma16(SP(b), ONES, PP(b), "0"), mfma16(OO(b), VB(max(b-1, 0)), PP(b), "0"))
        t(f"v_rcp_f32 v{MX(b)}, v{SP(b)}")
        for r in (0, 2): t(f"v_pk_mul_f32 {vr(OO(b)+r,2)}, {vr(OO(b)+r,2)}, {vr(MX(b),2)} op_sel_hi:[1,0]")
        t(cvt(QB(b), OO(b), OO(b)+1), cvt(QB(b)+1, OO(b)+2, OO(b)+3))
        t(f"ds_write_b64 v176, {vr(QB(b),2)} offset:{L_STG + b*2048}")
    a(*schedule(t.L))
    if o.get("verbose"): print("attention est cycles", schedule.last_cycles)
    a("s_waitcnt lgkmcnt(0)", "s_barrier")
    for j in range(3): a(f"ds_read_b128 {vr(28+4*j,4)}, v177 offset:{L_STG + j*1024}")
    for j in range(3):
        a(f"s_waitcnt lgkmcnt({2-j})", f"buffer_store_dwordx4 {vr(28+4*j,4)}, v{178+j}, {sr(R_WS,4)}, 0 offen{SC1}")
    a("s_branch K_P2C")

    a("K_SPEC:")
    s_ids()
    a("s_lshl_b32 s73, s3, 12", "s_add_u32 s73, s73, 65536")
    a("v_add_u32 v13, s73, v11", "v_add_u32 v14, s73, v12")
    COS, SIN, NCOS = 160, 168, 176
    a("v_cvt_f32_u32 v22, v20", "v_cvt_f32_u32 v23, v21", "v_mul_f32 v23, 4.0, v23")
    for tt in range(2):
        if tt: a("v_add_f32 v22, 0x41800000, v22")
        a("v_mul_f32 v24, 0x3d000000, v22", "v_mul_f32 v26, v24, v23")
        a("v_add_f32 v27, v24, v26", "v_fma_f32 v28, v24, 2.0, v26", "v_fma_f32 v29, v24, 2.0, v27", "v_mul_f32 v25, 0.5, v22")
        for j in range(4): a(f"v_add_f32 v{30+j}, v25, v{26+j}")
        for j in range(8): a(f"v_sin_f32 v{34+j}, v{26+j}", f"v_cos_f32 v{26+j}, v{26+j}")
        for i in range(4):
            a(cvt(COS+4*tt+i, 26+2*i, 27+2*i), cvt(SIN+4*tt+i, 34+2*i, 35+2*i), f"v_xor_b32 v{NCOS+4*tt+i}, 0x80008000, v{COS+4*tt+i}")
    a(f"s_mul_i32 s76, s8, {VP}", "s_lshl_b32 s77, s10, 4", "s_add_u32 s76, s76, s77", f"s_add_u32 s76, s76, {WS_V}")
    a(f"v_mul_u32_u24 v8, {4*16*VP}, v21", "v_lshl_add_u32 v8, v20, 4, v8", "v_add_u32 v8, s76, v8")
    a(f"v_mul_u32_u24 v9, {16*VP}, v1", "s_add_u32 s76, s76, 4096", "v_add_u32 v9, s76, v9")
    a("s_waitcnt vmcnt(0)"); gate()
    XA = lambda s, mt: 16 + 32*(s % 2) + 4*mt
    DB = lambda s, p: 80 + 8*(s % 2) + 4*p
    ACC = lambda mt, p: 96 + 8*mt + 4*p
    def s_reads(s):
        c, ks = s // 2, s % 2; st = slot(c)
        D = [[f"ds_read_b128 {vr(DB(s,p),4)}, v{13+ks} offset:{st*16384 + p*2048}"] for p in range(2)]
        X = [[f"ds_read_b128 {vr(XA(s,mt),4)}, v{11+ks} offset:{st*16384 + mt*2048}"] for mt in range(8)]
        return D[:1] + X[:1] + D[1:] + X[1:]
    def s_mfmas(s):
        return [mfma16(ACC(mt,p), XA(s,mt), DB(s,p), "0" if s == 0 else ACC(mt,p)) for mt in range(8) for p in range(2)]
    mainloop(s_reads, s_mfmas)
    BA = lambda q: 16 + 8*q
    BB = lambda q: 20 + 8*q
    t = Asm(); t(*s_mfmas(15))
    for q in range(4):
        for p, f in ((0, BA), (1, BB)):
            for hf in range(2):
                t(cvt(f(q)+2*hf, ACC(2*q+hf,p), ACC(2*q+hf,p)+1), cvt(f(q)+2*hf+1, ACC(2*q+hf,p)+2, ACC(2*q+hf,p)+3))
    a(*schedule(t.L))
    a("s_cmp_lg_u32 s10, 0", "s_cbranch_scc1 K_NONYQ")
    NA, ND = 48, 52
    for i in range(4): a(f"v_mov_b32 v{NA+i}, v{BB(0)+i}")
    for q in range(1, 4):
        for i in range(4): a(f"v_mov_b32_dpp v{NA+i}, v{BB(q)+i} row_shr:{q} row_mask:0xf bank_mask:0xf")
    for tt in range(2):
        a(mfma16(ND+8*tt, NA, COS+4*tt, "0"), mfma16(ND+8*tt+4, NA, SIN+4*tt, "0"))
    a("s_mov_b32 exec_lo, 0x00010001", "s_mov_b32 exec_hi, 0x00010001")
    for q in range(4):
        for i in range(4): a(f"v_mov_b32 v{BB(q)+i}, 0")
    a("s_mov_b32 exec_lo, 0xffff", "s_mov_b32 exec_hi, 0")
    for tt in range(2):
        for i in range(4): a(cvt(184+4*tt+i, ND+8*tt+2*i, ND+8*tt+2*i+1))
        a(f"s_mov_b32 s76, {tt*16*16*VP}", f"buffer_store_dwordx4 {vr(184+4*tt,4)}, v9, {sr(R_WS,4)}, s76 offen{SC1}")
    a("s_mov_b64 exec, -1", "s_nop 1")
    a("K_NONYQ:", "s_nop 1")
    t = Asm()
    for tt in range(2):
        for q in range(4):
            t(mfma16(ACC(2*q+tt,0), COS+4*tt, BA(q), "0"), mfma16(ACC(2*q+tt,1), SIN+4*tt, BA(q), "0"))
            t(mfma16(ACC(2*q+tt,0), SIN+4*tt, BB(q), ACC(2*q+tt,0)), mfma16(ACC(2*q+tt,1), NCOS+4*tt, BB(q), ACC(2*q+tt,1)))
        for r in range(4):
            d = 48 + 4*(4*tt+r)
            t(cvt(d, ACC(tt,0)+r, ACC(2+tt,0)+r), cvt(d+1, ACC(4+tt,0)+r, ACC(6+tt,0)+r),
              cvt(d+2, ACC(tt,1)+r, ACC(2+tt,1)+r), cvt(d+3, ACC(4+tt,1)+r, ACC(6+tt,1)+r))
            t(f"s_mov_b32 s{76+r%2}, {(16*tt+r)*16*VP}", f"buffer_store_dwordx4 {vr(d,4)}, v8, {sr(R_WS,4)}, s{76+r%2} offen{SC1}")
    a(*schedule(t.L))

    a("K_P2C:")
    stamp(4)
    p2_ids()
    a("s_mov_b32 s88, 0x3a000000", "s_mov_b32 s89, 0xba000000", "s_cmp_ge_u32 s6, 4", "s_cselect_b32 s13, s88, s89")
    a("s_lshr_b32 s78, s3, 1", "s_and_b32 s79, s3, 1")
    srd(a, R_OUT, P_OUT, 2048*1024)
    a("s_waitcnt vmcnt(0)", "s_barrier")
    stamp(5)
    WF = lambda ks: 16 + 4*ks
    VF = lambda ks: 48 + 4*ks
    AA, AB = 80, 96
    WO = lambda kk: 112 + 4*kk
    OF = lambda c, ks: 16 + 16*(c % 4) + 4*ks
    a("v_and_b32 v2, 31, v1", "v_lshrrev_b32 v3, 5, v1")
    a("v_and_b32 v240, 15, v1", "v_lshrrev_b32 v241, 2, v240", "v_lshl_add_u32 v241, v3, 3, v241", "v_lshlrev_b32 v241, 7, v241")
    a("v_lshrrev_b32 v242, 3, v240", "v_xor_b32 v242, s79, v242", "v_lshl_add_u32 v241, v242, 6, v241")
    a("v_bfe_u32 v242, v1, 4, 1", "v_lshl_add_u32 v241, v242, 5, v241", "v_and_b32 v242, 3, v1", "v_lshl_add_u32 v241, v242, 3, v241", f"v_add_u32 v15, {L_WO}, v241")
    rd = [[f"ds_read_b64_tr_b16 {vr(WO(4*c+ks)+2*sub,2)}, v15 offset:{c*8192 + (16*ks+4*sub)*128}"] for c in range(8) for ks in range(4) for sub in range(2)]
    t = Asm()
    t("s_lshl_b32 s76, s78, 5", "v_add_u32 v4, s76, v2", "v_lshlrev_b32 v5, 5, v4", "v_add_u32 v5, s8, v5")
    t("v_cvt_f32_u32 v240, v5", "v_mul_f32 v240, s13, v240", "v_cvt_f32_u32 v241, v3", "v_mul_f32 v241, 4.0, v241", "v_mul_f32 v241, v241, v240")
    t("v_mul_f32 v242, 0x41000000, v240")
    for ks in range(8):
        if ks: t("v_add_f32 v241, v241, v242")
        t("v_add_f32 v243, v241, v240", "v_fma_f32 v244, v240, 2.0, v241", "v_fma_f32 v245, v240, 2.0, v243")
        T = [241, 243, 244, 245]
        for j in range(4): t(f"v_cos_f32 v{246+j}, v{T[j]}", f"v_sin_f32 v{VF(0)+j}, v{T[j]}")
        t(cvt(WF(ks), 246, 247), cvt(WF(ks)+1, 248, 249), cvt(WF(ks)+2, VF(0), VF(0)+1), cvt(WF(ks)+3, VF(0)+2, VF(0)+3))
    t("v_lshrrev_b32 v240, 1, v2", "v_and_b32 v240, 7, v240", "v_xor_b32 v240, v240, v3", "v_lshlrev_b32 v240, 4, v240", "v_lshl_or_b32 v6, v4, 7, v240")
    for ks in range(1, 4): t(f"v_xor_b32 v{6+ks}, {32*ks}, v6")
    t("s_lshl_b32 s76, s79, 9", f"s_add_u32 s76, s76, {L_V}", "v_lshlrev_b32 v240, 4, v2", "v_lshl_add_u32 v240, v3, 10, v240", "v_add_u32 v10, s76, v240")
    t("s_lshl_b32 s76, s79, 2", "v_and_b32 v240, 7, v4", "v_xor_b32 v240, s76, v240", "v_lshlrev_b32 v240, 4, v240", "v_lshl_or_b32 v240, v4, 7, v240",
      "v_lshl_or_b32 v240, v3, 3, v240", f"v_add_u32 v11, {L_V}, v240")
    t("s_lshl_b32 s76, s3, 11", f"s_add_u32 s76, s76, {L_V}", "v_lshlrev_b32 v240, 4, v1", "v_add_u32 v12, s76, v240")
    t("v_lshrrev_b32 v241, 3, v1", "v_and_b32 v242, 7, v1", "v_xor_b32 v240, v241, v242", "v_lshlrev_b32 v240, 4, v240", "v_lshl_add_u32 v240, v241, 15, v240",
      "s_lshl_b32 s76, s3, 19", "s_lshl_b32 s77, s8, 10", "s_add_u32 s76, s76, s77", "s_lshl_b32 s77, s6, 7", "s_add_u32 s76, s76, s77",
      "v_add_u32 v13, s76, v240", f"v_add_u32 v14, {8*32768}, v13")
    t("v_lshlrev_b32 v5, 2, v5", f"s_mov_b32 s76, {WS_G}")
    L = []
    for i, x in enumerate(t.L):
        L.append(x)
        if i % 2 == 1 and rd: L += rd.pop(0)
    while rd: L += rd.pop(0)
    a(*L)
    a("s_waitcnt lgkmcnt(0)")
    stamp(6)
    a("s_barrier")
    stamp(7)
    a(f"buffer_load_dword v242, v5, {sr(R_WS,4)}, s76 offen{SC1}")
    a("s_barrier")
    stamp(8)
    for ks in range(8): a(f"ds_read_b128 {vr(VF(ks),4)}, v10 offset:{ks*2048}")
    for ks in range(8): a(f"s_waitcnt lgkmcnt({7-ks})", mfma32(AA, VF(ks), WF(ks), "0" if ks == 0 else AA))
    ordr = lambda c: [f"ds_read_b128 {vr(OF(c,ks),4)}, v{6+ks} offset:{L_O + c*8192}" for ks in range(4)]
    omf = lambda c: [mfma32(AB, WO(4*c+ks), OF(c,ks), "0" if (c == 0 and ks == 0) else AB) for ks in range(4)]
    a("s_barrier", *ordr(0))
    for c in range(1, 8):
        a("s_barrier")
        if c == 7: stamp(9)
        a(*ordr(c), "s_waitcnt lgkmcnt(4)")
        fill = []
        if c == 4:
            fill = [["s_waitcnt vmcnt(0)", "v_sub_f32 v244, 1.0, v242"]] + [[f"v_pk_mul_f32 {vr(AA+2*i,2)}, {vr(AA+2*i,2)}, v[242:243] op_sel_hi:[1,0]" for i in range(4*k, 4*k+4)] for k in range(2)]
        a(*interleave(omf(c-1), fill))
    a("s_waitcnt lgkmcnt(0)", *omf(7))
    for i in range(0, 8, 2):
        for k in (i, i+1): a(f"v_pk_fma_f32 {vr(AA+2*k,2)}, {vr(AB+2*k,2)}, v[244:245], {vr(AA+2*k,2)} op_sel_hi:[1,0,1]")
        if i: a(f"v_xor_b32 v240, {8*i}, v11")
        a(cvt(16+i, AA+2*i, AA+2*i+1), cvt(17+i, AA+2*i+2, AA+2*i+3))
        a(f"ds_write_b64 v{240 if i else 11}, {vr(16+i,2)}")
    a("s_waitcnt lgkmcnt(0)", "s_barrier")
    for j in range(2): a(f"ds_read_b128 {vr(24+4*j,4)}, v12 offset:{j*1024}")
    osc = " sc1" if o.get("outsc1") else (" nt" if o.get("outnt") else "")
    for j in range(2): a(f"s_waitcnt lgkmcnt({1-j})", f"buffer_store_dwordx4 {vr(24+4*j,4)}, v{13+j}, {sr(R_OUT,4)}, 0 offen{osc}")
    stamp(10)
    stamps_out(11)
    a("K_END:", "s_endpgm")
    return a.L

def k3probe(o):
    a = Asm(); p = o["probe"]
    a("s_cmp_lg_u32 s2, 0", "s_cbranch_scc1 K3_END")
    a("s_load_dwordx2 s[38:39], s[0:1], 88", "s_waitcnt lgkmcnt(0)")
    srd(a, R_WS, P_WS, WS_SIZE)
    a("v_and_b32 v1, 63, v0", "v_lshlrev_b32 v2, 2, v1", "v_bfe_u32 v3, v1, 0, 2", "v_add_u32 v2, v2, v3", "v_lshlrev_b32 v1, 10, v2", "v_mov_b32 v2, 0")
    a(f"s_mov_b32 s4, {WS_ST + 128*o.get('pwave', 0)}")
    if p == 1:
        a(f"buffer_load_dword v3, v2, {sr(R_WS,4)}, s4 offen offset:120", f"buffer_load_dword v4, v1, {sr(R_WS,4)}, s4 offen offset:124")
    else:
        a(f"buffer_load_dword v3, v1, {sr(R_WS,4)}, s4 offen offset:{4*o.get('pb', 0)}", f"buffer_load_dword v4, v1, {sr(R_WS,4)}, s4 offen offset:{4*o.get('pa', 0)}")
    a("s_waitcnt vmcnt(0)", "v_sub_u32 v4, v4, v3")
    op = "v_max_i32_dpp"
    for sh in (1, 2, 4, 8): a(f"{op} v4, v4, v4 row_shr:{sh} row_mask:0xf bank_mask:0xf")
    a(f"{op} v4, v4, v4 row_bcast:15 row_mask:0xa bank_mask:0xf", f"{op} v4, v4, v4 row_bcast:31 row_mask:0xc bank_mask:0xf")
    a("s_nop 1", "v_readlane_b32 s6, v4, 63", "s_nop 3", "s_max_i32 s6, s6, 0", "s_min_i32 s6, s6, 30000", f"s_mul_i32 s6, s6, {10 if p == 1 else (1 if p == 2 else 0)}")
    a("s_memrealtime s[8:9]", "s_waitcnt lgkmcnt(0)", "K3_LOOP:", "s_memrealtime s[10:11]", "s_waitcnt lgkmcnt(0)", "s_sub_u32 s10, s10, s8", "s_cmp_lt_u32 s10, s6", "s_cbranch_scc1 K3_LOOP")
    a("K3_END:", "s_endpgm")
    return a.L

def kd(name, vg):
    return f""".amdhsa_kernel {name}
  .amdhsa_next_free_vgpr {vg}
  .amdhsa_next_free_sgpr 102
  .amdhsa_accum_offset {vg}
  .amdhsa_group_segment_fixed_size 0
  .amdhsa_kernarg_size 96
  .amdhsa_user_sgpr_count 2
  .amdhsa_user_sgpr_kernarg_segment_ptr 1
  .amdhsa_system_sgpr_workgroup_id_x 1
.end_amdhsa_kernel
"""

def build(o):
    hdr = [l for l in open(f"cdna_kernels/{NAME}.s.ref").read().split("\n") if l.startswith(";") and "@launch" not in l and "Override" not in l and "grid=ceil" not in l]
    ks = [(KN, kernel(o))]
    if o.get("probe"):
        out = hdr + [f"; @launch kernel={KN} grid=(256,1,1) block=(512,1,1) lds={LDS}", "; @launch kernel=k3_kernel grid=(256,1,1) block=(256,1,1) lds=0"]
        ks.append(("k3_kernel", k3probe(o)))
    elif o.get("aslist"): out = hdr + [f"; @launch kernel={KN} grid=(256,1,1) block=(512,1,1) lds={LDS}"]
    else: out = hdr + [f"; @launch grid=(256,1,1) block=(512,1,1) lds={LDS}"]
    out += ['.amdgcn_target "amdgcn-amd-amdhsa--gfx950"', ".text"]
    for n, L in ks:
        out += [f".globl {n}", ".p2align 8", f".type {n},@function", f"{n}:"]
        out += ["    " + x if not x.endswith(":") else x for x in fix_hazards(L, verbose=o.get("verbose"))]
        if n == KN: out.append("CODE_END:")
    out += ['.section .rodata,"a"']
    for n, L in ks: out += [".p2align 6", kd(n, 256)]
    return "\n".join(out) + "\n"

if __name__ == "__main__":
    o = {}
    path = f"cdna_kernels/{NAME}.s"
    for x in sys.argv[1:]:
        if "=" in x:
            k, v = x.split("="); o[k] = int(v)
        else: path = x
    o["verbose"] = 1
    open(path, "w").write(build(o))
    print("wrote", path)
```

```python
import sys
sys.path.insert(0, "work")
from asmlib import *

NAME = "gated_mix__spectral_fnet__sliding_local_dilated__prompt"
KN = NAME + "_kernel"
WS_O, WS_V, WS_G, WS_FL, WS_ST = 0, 0x200000, 0x440000, 0x450000, 0x460000
VP = 4224
WS_SIZE = 0x4C0000
NEG = 0xF149F2CA
SCL = 0x3EB8AA3B
LDS = 163840
L_O, L_WO, L_V, L_STG, L_CNT = 0, 81920, 147456, 12288, 147456

P_X, P_SRE, P_SIM, P_HRE, P_HIM, P_BX, P_WQ, P_WO, P_GW, P_OUT, P_DBG, P_WS = range(16, 40, 2)
R_X, R_WQ, R_HRE, R_HIM, R_GW, R_WS, R_CODE, R_WO, R_OUT = range(40, 76, 4)
R_DBG = R_CODE

def srd(a, r, p, size, delta=0):
    if delta: a(f"s_sub_u32 s{r}, s{p}, {delta}", f"s_subb_u32 s{r+1}, s{p+1}, 0")
    else: a(f"s_mov_b64 {sr(r,2)}, {sr(p,2)}")
    a(f"s_mov_b32 s{r+2}, {size+delta}", f"s_mov_b32 s{r+3}, 0x20000")

def mfma16(d, x, y, c): return f"v_mfma_f32_16x16x32_bf16 {vr(d,4)}, {vr(x,4)}, {vr(y,4)}, {c if isinstance(c,str) else vr(c,4)}"
def mfma32(d, x, y, c): return f"v_mfma_f32_32x32x16_bf16 {vr(d,16)}, {vr(x,4)}, {vr(y,4)}, {c if isinstance(c,str) else vr(c,16)}"
def cvt(d, x, y): return f"v_cvt_pk_bf16_f32 v{d}, v{x}, v{y}"

def kernel(o):
    a = Asm()
    SC1 = " sc1"
    def stamp(k, rt=None):
        if not o.get("stamp"): return
        a("s_memtime s[96:97]")
        if rt is not None: a("s_memrealtime s[98:99]")
        a("s_waitcnt lgkmcnt(0)", f"v_writelane_b32 v255, s96, {k}")
        if rt is not None: a(f"v_writelane_b32 v255, s98, {rt}")
    def stamps_out(k):
        if not o.get("stamp"): return
        a("s_waitcnt vmcnt(0)"); stamp(k, 31)
        a("s_lshl_b32 s96, s2, 3", "s_add_u32 s96, s96, s3", "s_lshl_b32 s96, s96, 7", f"s_add_u32 s96, s96, {WS_ST}",
          "v_lshlrev_b32 v254, 2, v1", "s_mov_b32 exec_hi, 0", f"buffer_store_dword v255, v254, {sr(R_WS,4)}, s96 offen")
    slot = lambda c: (c + 1) % 4

    stamp(0, 30)
    a("s_load_dwordx16 s[16:31], s[0:1], 0", "s_load_dwordx8 s[32:39], s[0:1], 64")
    a(f"s_getpc_b64 {sr(R_CODE,2)}", "K_PC:")
    a("v_lshrrev_b32 v15, 6, v0", "v_and_b32 v1, 63, v0")
    a("s_cmp_ge_u32 s2, 256", "s_cbranch_scc1 K_END")
    a("v_readfirstlane_b32 s3, v15")
    a("s_and_b32 s4, s2, 7", "s_lshr_b32 s5, s2, 3", "v_lshrrev_b32 v16, 3, v1", "v_and_b32 v17, 7, v1", "v_lshlrev_b32 v19, 4, v1")
    a("s_lshr_b32 s9, s5, 2", "s_and_b32 s11, s5, 3", "s_and_b32 s15, s3, 3")
    def q_ids():
        a("s_lshr_b32 s8, s4, 1", "s_lshl_b32 s8, s8, 3", "s_add_u32 s8, s8, s9", "s_and_b32 s10, s4, 1", "s_lshl_b32 s10, s10, 2", "s_add_u32 s10, s10, s11")
        a("s_lshr_b32 s12, s8, 1", "s_mul_i32 s12, s12, 85", "s_and_b32 s13, s8, 1", "s_lshl_b32 s14, s12, 1", "s_add_u32 s14, s14, s13", "s_lshl_b32 s14, s14, 10")
    a("s_cmp_lt_u32 s3, 4", "s_cbranch_scc1 K_COMP")
    if o.get("lprio", 3): a(f"s_setprio {o.get('lprio', 3)}")
    a("s_lshl_b32 s6, s5, 2", "s_add_u32 s6, s6, s15")
    if o.get("codepf", 1):
        a(f"s_mov_b32 s{R_CODE+2}, CODE_END-K_PC", f"s_mov_b32 s{R_CODE+3}, 0x20000", "v_lshrrev_b32 v2, 5, v1", "s_lshl_b32 s7, s6, 8", "v_lshlrev_b32 v2, 7, v2")
        a(f"buffer_load_dword v252, v2, {sr(R_CODE,4)}, s7 offen")
    a("s_lshl_b32 s8, s4, 5", "s_add_u32 s8, s8, s5", "s_mul_i32 s12, s8, 171", "s_lshr_b32 s12, s12, 10", "s_mul_i32 s10, s12, 6", "s_sub_u32 s10, s8, s10",
      "s_cmp_ge_u32 s10, 3", "s_addc_u32 s10, s10, 1", "s_lshl_b32 s12, s12, 3", "s_add_u32 s12, s12, s10")
    a("s_lshl_b32 s10, s5, 1", "s_add_u32 s10, s10, s4", "s_sub_u32 s10, s10, 6", "s_lshl_b32 s10, s10, 2")
    a("s_lshr_b32 s13, s4, 1", "s_lshl_b32 s13, s13, 7", "s_add_u32 s13, s13, s6", "s_lshl_b32 s13, s13, 3", "s_and_b32 s14, s4, 1", "s_add_u32 s13, s13, s14", "s_lshl_b32 s13, s13, 9",
      "s_lshl_b32 s14, s6, 11")
    a("s_cmp_ge_u32 s4, 6", "s_cselect_b32 s12, s10, s12", "s_cselect_b32 s93, s14, s13", "s_cselect_b32 s13, 9, 10")
    a("s_lshl_b32 s12, s12, 2", "s_add_u32 s12, s12, s15", "s_lshl_b32 s92, s12, 1", "s_lshl_b32 s7, s12, 11")
    a("v_lshrrev_b32 v3, 4, v1", "v_lshlrev_b32 v3, s13, v3", "v_bfe_u32 v4, v1, 2, 2", "v_lshl_add_u32 v20, v4, 7, v3")
    a("v_lshrrev_b32 v18, 1, v16", "v_xor_b32 v18, v17, v18", "v_lshlrev_b32 v18, 4, v18")
    q_ids()
    a("s_mul_i32 s76, s15, 49152", "s_add_u32 s77, s76, s14", "s_and_b32 s78, s15, 1", "s_lshl_b32 s78, s78, 6")
    a("v_xor_b32 v2, s78, v18", "v_lshl_add_u32 v2, v16, 11, v2", "v_add_u32 v2, s77, v2")
    a("s_movk_i32 s77, 15360", "v_xad_u32 v3, v2, 64, s77", "v_add_u32 v4, 30720, v2")
    a("s_lshl_b32 s77, s10, 7", "s_add_u32 s76, s76, s77")
    wcalc = []
    for j in range(3):
        wcalc += [f"v_add_u32 v22, {8*j}, v16", "v_mul_u32_u24 v23, 43, v22", "v_lshrrev_b32 v24, 7, v23", "v_and_b32 v24, 2, v24",
          "v_lshrrev_b32 v23, 8, v23", "v_and_or_b32 v23, v23, 4, v24", "v_xor_b32 v23, v23, v17",
          "v_lshlrev_b32 v23, 4, v23", f"v_subrev_u32 v22, {j}, v22", "v_lshl_add_u32 v23, v22, 10, v23", f"v_add_u32 v{5+j}, s76, v23"]
    wcalc += ["s_movk_i32 s77, 24576"] + [f"v_xad_u32 v{8+j}, v{5+j}, 64, s77" for j in range(3)]
    if o.get("wearly", 1): a(*wcalc)
    if o.get("slowt", 1):
        a("v_lshrrev_b32 v21, 2, v1", "v_min_u32 v21, 11, v21", "v_lshlrev_b32 v21, 10, v21", "s_mul_i32 s94, s6, 12288", "s_add_u32 s94, s94, 384",
          "s_bitcmp1_b32 0x15, s4", "s_cselect_b32 s94, s94, 0x7ff00000")
    a("s_waitcnt lgkmcnt(0)")
    srd(a, R_X, P_X, 2048*1024)
    tnt = " nt" if o.get("touchnt") else ""
    a(f"buffer_load_dwordx4 v[240:243], v19, {sr(R_X,4)}, s7 offen{tnt}", f"buffer_load_dwordx4 v[244:247], v19, {sr(R_X,4)}, s7 offen offset:1024{tnt}")
    a("s_cmp_eq_u32 s4, 6", f"s_cselect_b64 {sr(R_WQ,2)}, {sr(P_HRE,2)}, {sr(P_HIM,2)}", "s_mov_b32 s77, 0x180000",
      "s_cmp_ge_u32 s4, 6", f"s_cselect_b64 {sr(R_WQ,2)}, {sr(R_WQ,2)}, {sr(P_WQ,2)}", f"s_cselect_b32 s{R_WQ+2}, 0x80000, s77", f"s_mov_b32 s{R_WQ+3}, 0x20000")
    if o.get("touch", 1): a(f"buffer_load_dword v252, v20, {sr(R_WQ,4)}, s93 offen{tnt}")
    a("s_cbranch_scc1 K_SLOAD")
    if o.get("slowt", 1): a(f"buffer_load_dword v252, v21, {sr(R_WQ,4)}, s94 offen")

    def rot(r):
        if r == 0: a("s_mov_b32 s76, 0")
        elif r == 1: a("s_lshl_b32 s76, s11, 8")
        elif r == 2: a("s_lshl_b32 s76, s11, 1", "s_add_u32 s76, s76, s9", "s_and_b32 s76, s76, 7", "s_lshl_b32 s76, s76, 7")
    def gate():
        R = (252, 253)
        a("v_mov_b32 v252, 0", "v_mov_b32 v253, 0")
        for i in range(4): a(f"v_dot2c_f32_bf16 v252, v{240+i}, v{248+i}", f"v_dot2c_f32_bf16 v253, v{244+i}, v{248+i}")
        a("s_lshl_b32 s90, s92, 2", f"s_add_u32 s90, s90, {WS_G}", "v_cmp_eq_u32 vcc, 63, v1", "v_mov_b32 v244, 0x80000000")
        for sh in (1, 2, 4, 8):
            for r in R: a(f"v_add_f32_dpp v{r}, v{r}, v{r} row_shr:{sh} row_mask:0xf bank_mask:0xf bound_ctrl:1")
        for r in R: a(f"v_add_f32_dpp v{r}, v{r}, v{r} row_bcast:15 row_mask:0xa bank_mask:0xf")
        for r in R: a(f"v_add_f32_dpp v{r}, v{r}, v{r} row_bcast:31 row_mask:0xc bank_mask:0xf")
        a("v_cndmask_b32_e64 v244, v244, 0, vcc")
        for op in ("v_mul_f32 v{0}, 0xbfb8aa3b, v{0}", "v_exp_f32 v{0}, v{0}", "v_add_f32 v{0}, 1.0, v{0}", "v_rcp_f32 v{0}, v{0}"):
            for r in R: a(op.format(r))
        a(f"buffer_store_dwordx2 v[252:253], v244, {sr(R_WS,4)}, s90 offen{SC1}")
    def loop_tail(n, lab):
        a("s_add_u32 s80, s80, 1", "s_cmp_eq_u32 s80, 1", f"s_cbranch_scc1 {lab}")
        a(f"s_waitcnt vmcnt({n})", "s_barrier")
        if o.get("stamp", 0) == 2: a("s_memtime s[96:97]", "s_waitcnt lgkmcnt(0)", "s_mov_b32 m0, s80", "s_nop 0", "v_writelane_b32 v255, s96, m0")
        a("s_cmp_lt_u32 s80, 8", f"s_cbranch_scc1 {lab}")

    if not o.get("wearly", 1): a(*wcalc)
    rot(o.get("rotq", 0))
    a("s_mul_i32 s78, s15, 3072", "s_add_u32 s81, s78, 49152", "s_lshl_b32 s79, s78, 1", "s_add_u32 s78, s78, 12288", f"s_add_u32 s79, s79, {49152+24576}", "s_mov_b32 s80, 0")
    stamp(1)
    a("K_QL:")
    a("s_mov_b32 m0, s78", "s_mul_i32 s77, s76, 1536")
    for j in range(3): a(f"buffer_load_dwordx4 v{2+j}, {sr(R_X,4)}, s76 offen" + (f" offset:{1024*j}" if j else "") + " lds")
    a("s_mov_b32 m0, s79", "s_add_u32 s76, s76, 128")
    for j in range(3): a(f"buffer_load_dwordx4 v{5+j}, {sr(R_WQ,4)}, s77 offen" + (f" offset:{1024*j}" if j else "") + " lds")
    a("s_add_u32 m0, s79, 3072", "s_and_b32 s76, s76, 0x3ff")
    for j in range(3): a(f"buffer_load_dwordx4 v{8+j}, {sr(R_WQ,4)}, s77 offen" + (f" offset:{1024*j}" if j else "") + " lds")
    a("s_add_u32 s78, s78, 12288", "s_add_u32 s79, s79, 24576", "s_cmp_eq_u32 s78, s81", "s_cselect_b32 s83, 49152, 0", "s_sub_u32 s78, s78, s83", "s_lshl_b32 s83, s83, 1", "s_sub_u32 s79, s79, s83")
    loop_tail(9, "K_QL")
    a("s_branch K_P2L")
    a("K_SLOAD:")
    def s_ids():
        a("s_sub_u32 s8, s4, 6", "s_lshl_b32 s8, s8, 3", "s_add_u32 s8, s8, s9")
        a("s_lshl_b32 s10, s11, 6", "s_lshl_b32 s77, s15, 4", "s_add_u32 s10, s10, s77")
    s_ids(); rot(o.get("rots", 0))
    a("s_lshl_b32 s77, s8, 2", "s_add_u32 s77, s77, s15", "s_lshl_b32 s77, s77, 10")
    a("v_lshl_add_u32 v2, v16, 16, v18", "v_add_u32 v2, s77, v2")
    a(f"s_mov_b32 s77, {8*65536-1024}", "v_xad_u32 v3, v2, 64, s77", f"v_add_u32 v4, {2*(8*65536-1024)}, v2", f"v_add_u32 v5, {2*(8*65536-1024)}, v3")
    a("s_lshl_b32 s77, s10, 10")
    a("v_lshl_add_u32 v6, v16, 10, v18", "v_add_u32 v6, s77, v6", "s_movk_i32 s77, 7168", "v_xad_u32 v7, v6, 64, s77")
    a("s_lshl_b32 s78, s15, 12", "s_add_u32 s81, s78, 65536")
    a("s_cmp_eq_u32 s10, 0", "s_cselect_b32 s12, 0xffffff00, -1")
    a("v_mov_b32 v22, 0xbf803f80", "v_mov_b32 v23, v22", "v_mov_b32 v24, v22", "v_mov_b32 v25, v22")
    a("v_lshlrev_b32 v26, 14, v16", "v_lshl_add_u32 v26, v17, 4, v26", "v_and_b32 v26, 0xffff, v26", "v_add_u32 v26, s81, v26")
    a("ds_write_b128 v26, v[22:25] offset:2048")
    srd(a, R_HRE, P_HRE, 512*1024); srd(a, R_HIM, P_HIM, 512*1024, delta=2048)
    a("s_add_u32 s78, s78, 16384", "s_mov_b32 s80, 0", "s_waitcnt lgkmcnt(0)")
    stamp(1)
    a("K_SL:")
    a("s_mov_b32 m0, s78", "s_add_u32 s79, s78, 65536")
    for j in range(4): a(f"buffer_load_dwordx4 v{2+j}, {sr(R_X,4)}, s76 offen" + (f" offset:{1024*j}" if j else "") + " lds")
    a("s_mov_b32 m0, s79", "s_add_u32 s78, s78, 16384")
    a(f"buffer_load_dwordx4 v6, {sr(R_HRE,4)}, s76 offen lds", f"buffer_load_dwordx4 v7, {sr(R_HRE,4)}, s76 offen offset:1024 lds")
    a("s_mov_b32 exec_lo, s12", f"buffer_load_dwordx4 v6, {sr(R_HIM,4)}, s76 offen offset:2048 lds", "s_mov_b32 exec_lo, -1")
    a(f"buffer_load_dwordx4 v7, {sr(R_HIM,4)}, s76 offen offset:3072 lds")
    a("s_add_u32 s76, s76, 128", "s_and_b32 s76, s76, 0x3ff", "s_and_b32 s78, s78, 0xffff")
    loop_tail(8, "K_SL")

    def p2_ids():
        a("s_and_b32 s6, s5, 7", "s_lshr_b32 s7, s5, 3")
        a("s_lshl_b32 s8, s4, 1", "s_lshr_b32 s9, s7, 1", "s_add_u32 s8, s8, s9")
        a("s_sub_u32 s9, 32, s8", "s_cmp_eq_u32 s8, 0", "s_cselect_b32 s9, 16, s9", "s_bitcmp1_b32 s7, 0", "s_cselect_b32 s8, s9, s8")
    a("K_P2L:")
    srd(a, R_GW, P_GW, 1024); srd(a, R_WO, P_WO, 512*1024)
    a("v_mov_b32 v21, 0", f"buffer_load_dwordx4 v[248:251], v19, {sr(R_GW,4)}, 0 offen")
    npf = 0
    if o.get("wopf", 1):
        npf = 1
        a("v_lshrrev_b32 v22, 1, v1", "v_lshlrev_b32 v22, 7, v22", "s_lshl_b32 s76, s6, 12", f"buffer_load_dword v12, v22, {sr(R_WO,4)}, s76 offen")
    p2_ids()
    srd(a, R_DBG, P_DBG, 256); srd(a, R_WS, P_WS, WS_SIZE)
    a("v_and_b32 v5, 2, v16", "v_lshlrev_b32 v5, 1, v5", "v_xor_b32 v5, v5, v17", "v_lshlrev_b32 v5, 4, v5", "v_lshl_add_u32 v5, v16, 10, v5")
    a("s_lshl_b32 s76, s15, 14", "s_lshl_b32 s77, s6, 7", "s_add_u32 s76, s76, s77", "v_add_u32 v5, s76, v5", "v_add_u32 v6, 7168, v5")
    a("s_lshl_b32 s78, s15, 11")
    a(f"s_waitcnt vmcnt({1+npf})", "s_barrier"); stamp(9)
    a("v_mov_b32 v20, 1", f"s_waitcnt vmcnt({npf})", "s_cmp_lg_u32 s15, 1", "s_cbranch_scc1 K_NOGO", f"buffer_load_dword v20, v21, {sr(R_DBG,4)}, 0 offen{SC1}", "K_NOGO:")
    gate()
    stamp(13)
    a("s_sub_u32 s9, 32, s8", "s_and_b32 s9, s9, 31", "s_cmp_ge_u32 s6, 4", "s_cselect_b32 s9, s9, s8")
    a("s_cselect_b32 s10, -16, 16", "s_lshl_b32 s11, s6, 10", "s_sub_u32 s12, 8192, s11", "s_cmp_ge_u32 s6, 4", "s_cselect_b32 s11, s12, s11")
    a(f"s_mul_i32 s14, s9, {16*VP}", "s_add_u32 s14, s14, s11", f"s_mul_i32 s76, s15, {4*VP}", "s_add_u32 s14, s14, s76", f"s_add_u32 s14, s14, {WS_V}")
    a("v_mul_i32_i24 v2, s10, v1", "v_add_u32 v2, s14, v2")
    a("s_lshl_b32 s76, s15, 19", "s_lshl_b32 s77, s8, 10", "s_add_u32 s76, s76, s77", f"s_add_u32 s76, s76, {WS_O}")
    a("v_lshl_add_u32 v3, v16, 15, v18", "v_add_u32 v3, s76, v3", f"s_mov_b32 s77, {8*32768-1024}", "v_xad_u32 v4, v3, 64, s77")
    FS = o.get("fs", 8)
    a(f"v_lshlrev_b32 v23, {FS}, v1", "v_mov_b32 v25, 8", "s_lshl_b32 s79, s15, 12")
    a(f"s_lshl_b32 s82, s4, {FS+5}", f"s_add_u32 s82, s82, {WS_FL}", "s_movk_i32 s84, 20000")
    a("s_waitcnt vmcnt(0)")
    a("K_GO:", "v_readfirstlane_b32 s90, v20", "s_sub_u32 s84, s84, 1", "s_cselect_b32 s90, 1, s90", "s_cmp_lg_u32 s90, 0", "s_cbranch_scc1 K_GOK",
      f"buffer_load_dword v20, v21, {sr(R_DBG,4)}, 0 offen{SC1}", "s_waitcnt vmcnt(0)", "s_branch K_GO", "K_GOK:")
    stamp(10)
    a("s_cmp_ge_u32 s4, 6", "s_cbranch_scc1 K_NOSTG", "s_barrier", "K_NOSTG:")
    a("s_barrier")
    for c in range(8):
        a(f"s_add_u32 m0, s78, {L_WO + c*8192}", *([f"s_add_u32 s76, s6, {c}", "s_and_b32 s76, s76, 7", "s_lshl_b32 s76, s76, 16"] if o.get("rotk2", 0) else [f"s_mov_b32 s76, {c*65536}"]),
          f"buffer_load_dwordx4 v5, {sr(R_WO,4)}, s76 offen lds", f"buffer_load_dwordx4 v6, {sr(R_WO,4)}, s76 offen offset:1024 lds")
    a("s_waitcnt vmcnt(0)")
    stamp(11)
    a("s_barrier")
    a("s_cmp_lg_u32 s15, 0", "s_cbranch_scc1 K_POLLED", "s_movk_i32 s84, 20000", "s_mov_b32 exec_hi, 0")
    a("K_POLL:", f"buffer_load_dword v26, v23, {sr(R_WS,4)}, s82 offen{SC1}", "s_sub_u32 s84, s84, 1", "s_cbranch_scc1 K_POLLX", "s_waitcnt vmcnt(0)",
      "v_cmp_eq_u32 vcc, v25, v26", "s_cmp_eq_u64 vcc, exec")
    if o.get("psleep", 0): a("s_cbranch_scc1 K_POLLX", f"s_sleep {o['psleep']}", "s_branch K_POLL")
    else: a("s_cbranch_scc0 K_POLL")
    a("K_POLLX:", "s_mov_b32 exec_hi, -1", "K_POLLED:")
    if o.get("rotk2", 0): a("s_lshl_b32 s85, s6, 7")
    stamp(12)
    a("s_barrier")
    G = []
    for c in range(8):
        so = [f"s_add_u32 s76, s85, {c*128}", "s_and_b32 s76, s76, 0x3ff"] if o.get("rotk2", 0) else [f"s_movk_i32 s76, {c*128}"]
        G.append([[f"s_add_u32 m0, s78, {L_O + c*8192}"] + so + [f"buffer_load_dwordx4 v3, {sr(R_WS,4)}, s76 offen{SC1} lds"],
                  [f"buffer_load_dwordx4 v4, {sr(R_WS,4)}, s76 offen offset:1024{SC1} lds"]])
    G.append([([f"s_movk_i32 s76, {j*(VP-1024)}"] if j else [f"s_add_u32 m0, s79, {L_V}", "s_mov_b32 s76, 0"]) + [f"buffer_load_dwordx4 v2, {sr(R_WS,4)}, s76 offen" + (f" offset:{1024*j}" if j else "") + f"{SC1} lds"] for j in range(4)])
    flat = [(gi, ins) for gi, g in enumerate(G) for ins in g]
    last = {gi: i for i, (gi, _) in enumerate(flat)}
    nxt, lag = 0, o.get("lag2", 8)
    for i, (gi, ins) in enumerate(flat):
        a(*ins)
        while nxt < len(G) and i - last[nxt] >= lag:
            a(f"s_waitcnt vmcnt({i - last[nxt]})", "s_barrier"); nxt += 1
    stamp(14)
    for k in range(nxt, len(G)): a(f"s_waitcnt vmcnt({len(flat)-1-last[k]})", "s_barrier")
    stamps_out(15)
    a("s_endpgm")

    a("K_COMP:")
    a("v_and_b32 v20, 15, v1", "v_lshrrev_b32 v21, 4, v1")
    a("v_lshrrev_b32 v11, 1, v20", "v_xor_b32 v11, v21, v11", "v_lshlrev_b32 v11, 4, v11", "v_lshl_or_b32 v11, v20, 7, v11")
    a("v_xor_b32 v12, 64, v11")
    a(f"v_mov_b32 v2, {L_CNT}", "v_mov_b32 v3, 0", "ds_write_b32 v2, v3")
    a("s_waitcnt lgkmcnt(0)")
    srd(a, R_WS, P_WS, WS_SIZE)
    a("s_cmp_ge_u32 s4, 6", "s_cbranch_scc1 K_SPEC")
    def mainloop(reads, mfmas):
        stamp(1)
        a(".p2align 3", "s_barrier", "s_nop 0")
        stamp(2)
        for g_ in reads(0): a(*g_)
        for s in range(15):
            c, ks = s // 2, s % 2
            a("s_waitcnt lgkmcnt(0)", "s_barrier" if ks == 1 else "s_nop 0")
            a(*interleave(mfmas(s), reads(s+1)))
        a("s_waitcnt lgkmcnt(0)", "s_nop 0")
        stamp(3)

    a("s_or_b32 s76, s2, s3", "s_cmp_lg_u32 s76, 0", "s_cbranch_scc1 K_NOZERO")
    srd(a, R_DBG, P_DBG, 256)
    a(f"v_lshlrev_b32 v23, {FS}, v1", "v_mov_b32 v24, 0", "v_mov_b32 v22, 1")
    for i in range(4): a(f"s_mov_b32 s82, {WS_FL + (i << (FS+6))}", f"buffer_store_dword v24, v23, {sr(R_WS,4)}, s82 offen{SC1}")
    a("s_waitcnt vmcnt(0)", "s_mov_b64 exec, 1", f"buffer_store_dword v22, v24, {sr(R_DBG,4)}, 0 offen{SC1}", "s_mov_b64 exec, -1")
    a("K_NOZERO:")
    q_ids()
    a("v_lshrrev_b32 v22, 2, v20", "v_lshl_add_u32 v22, v21, 3, v22", "v_mul_u32_u24 v22, 384, v22")
    a("v_lshrrev_b32 v23, 3, v20", "v_and_b32 v24, 1, v21", "v_lshl_or_b32 v23, v24, 1, v23", "v_xor_b32 v23, s3, v23")
    a("v_lshl_add_u32 v22, v23, 5, v22", "v_and_b32 v23, 3, v20", "v_lshl_add_u32 v22, v23, 3, v22")
    a("v_add_u32 v13, 49152, v22", "v_add_u32 v14, 98304, v22")
    MC, MP, SM, ONES = 160, 164, 168, 172
    a("v_lshlrev_b32 v22, 2, v21", "v_sub_u32 v22, v20, v22", f"v_mov_b32 v24, {NEG:#x}", "v_mov_b32 v25, 0")
    for r in range(4):
        a(f"v_subrev_u32 v23, {r}, v22", "v_cmp_gt_u32 vcc, 8, v23", "v_cmp_gt_i32 s[76:77], -8, v23", f"v_mov_b32 v{ONES+r}, 0x3f803f80",
          f"v_cndmask_b32 v{MC+r}, v24, v25, vcc", f"v_cndmask_b32 v{MP+r}, v24, v25, s[76:77]")
    a("v_mov_b32 v26, 0xffff", "v_mov_b32 v27, 0xffff0000")
    for h in range(2):
        a(f"v_cmp_le_i32 vcc, {2*h}, v22", f"v_cmp_le_i32 s[76:77], {2*h+1}, v22", "s_nop 0", "v_cndmask_b32 v28, v25, v26, vcc", "v_cndmask_b32 v29, v25, v27, s[76:77]",
          f"v_or_b32 v{SM+h}, v28, v29")
    a("v_lshrrev_b32 v22, 1, v21", "s_lshl_b32 s76, s3, 1", "v_add_u32 v22, s76, v22", "v_and_b32 v23, 7, v20", "v_xor_b32 v22, v22, v23",
      "v_lshlrev_b32 v22, 4, v22", "v_lshl_or_b32 v22, v20, 7, v22", "v_and_b32 v23, 1, v21", "v_lshl_or_b32 v176, v23, 3, v22")
    a("s_mul_i32 s76, s3, 3072", "v_add_u32 v177, s76, v19")
    a("v_xor_b32 v22, v17, v16", "v_lshlrev_b32 v22, 4, v22", "s_lshl_b32 s76, s10, 7", "s_add_u32 s76, s76, s14", f"s_add_u32 s76, s76, {WS_O}", "v_add_u32 v22, s76, v22")
    a("s_cmp_eq_u32 s12, 0", "s_cselect_b32 s77, 0, 11", "s_sub_u32 s78, 1024, s12", "s_sub_u32 s78, s78, s77", "s_mul_i32 s76, s3, 24", "v_mov_b32 v24, 0x80000000")
    for j in range(3):
        a(f"v_add_u32 v23, s76, v16", *( [f"v_add_u32 v23, {8*j}, v23"] if j else []),
          "v_lshl_add_u32 v26, v23, 11, v22", "v_subrev_u32 v23, s77, v23", "v_cmp_gt_u32 vcc, s78, v23", f"v_cndmask_b32 v{178+j}, v24, v26, vcc")
    a(f"s_mov_b32 s94, {SCL:#x}", f"s_mov_b32 s95, {SCL:#x}")
    XA = lambda s, b: 16 + 24*(s % 2) + 4*b
    WB = lambda s, sg: 64 + 12*(s % 2) + 4*sg
    ACC = lambda b, sg: 88 + 12*b + 4*sg
    def q_reads(s):
        c, ks = s // 2, s % 2; st = slot(c); L = []
        wb = 13 if st < 2 else 14
        for sg in range(3):
            for sub in range(2):
                L.append([f"ds_read_b64_tr_b16 {vr(WB(s,sg)+2*sub,2)}, v{wb} offset:{(st%2)*24576 + (32*ks+4*sub)*384 + sg*128}"])
        X = [[f"ds_read_b128 {vr(XA(s,b),4)}, v{11+ks} offset:{st*12288 + b*2048}"] for b in range(6)]
        return L[:2] + X[:1] + L[2:] + X[1:]
    def q_mfmas(s):
        L = []
        for b in range(6):
            for sg in range(3):
                c_ = "0" if s == 0 else ACC(b, sg)
                if sg < 2: L.append(mfma16(ACC(b,sg), WB(s,sg), XA(s,b), c_))
                else: L.append(mfma16(ACC(b,sg), XA(s,b), WB(s,sg), c_))
        return L
    mainloop(q_reads, q_mfmas)
    QB = lambda b: 16 + 2*b
    KB = lambda b: 28 + 2*b
    VB = lambda b: 64 + 2*b
    MX = lambda b: 208 + 2*b
    PP = lambda b: 184 + 4*b
    SC = lambda b: ACC(b, 0)
    SP = lambda b: ACC(b, 1)
    OO = lambda b: ACC(b, 2)
    t = Asm()
    t(*q_mfmas(15))
    for b in range(6):
        for sg, f in ((1, KB), (0, QB), (2, VB)):
            t(cvt(f(b), ACC(b,sg), ACC(b,sg)+1), cvt(f(b)+1, ACC(b,sg)+2, ACC(b,sg)+3))
    for b in range(6):
        t(f"v_mfma_f32_16x16x16_bf16 {vr(SC(b),4)}, {vr(KB(b),2)}, {vr(QB(b),2)}, {vr(MC,4)}")
        if b: t(f"v_mfma_f32_16x16x16_bf16 {vr(SP(b),4)}, {vr(KB(b-1),2)}, {vr(QB(b),2)}, {vr(MP,4)}")
    for b in range(6):
        if b:
            for r in range(4): t(f"v_max_f32 v{SC(b)+r}, v{SC(b)+r}, v{SP(b)+r}")
        t(f"v_max3_f32 v{MX(b)}, v{SC(b)}, v{SC(b)+1}, v{SC(b)+2}", f"v_max_f32 v{MX(b)}, v{MX(b)}, v{SC(b)+3}")
    for x, y in [(0, 1), (2, 3), (4, 5)]:
        t(f"v_permlane32_swap_b32 v{MX(x)}, v{MX(y)}", f"v_max_f32 v{MX(x)}, v{MX(x)}, v{MX(y)}", f"v_mov_b32 v{MX(y)}, v{MX(x)}",
          f"v_permlane16_swap_b32 v{MX(x)}, v{MX(y)}", f"v_max_f32 v{MX(x)}, v{MX(x)}, v{MX(y)}", f"v_mul_f32 v{MX(x)}, s94, v{MX(x)}",
          f"v_mov_b32 v{MX(y)}, v{MX(x)}", f"v_permlane32_swap_b32 v{MX(x)}, v{MX(y)}")
    for b in range(6):
        for r in (0, 2): t(f"v_pk_fma_f32 {vr(SC(b)+r,2)}, {vr(SC(b)+r,2)}, s[94:95], {vr(MX(b),2)} op_sel_hi:[1,1,0] neg_lo:[0,0,1] neg_hi:[0,0,1]")
        for r in range(4): t(f"v_exp_f32 v{SC(b)+r}, v{SC(b)+r}")
        if b == 0:
            t(cvt(PP(0), SC(0), SC(0)+1), cvt(PP(0)+1, SC(0)+2, SC(0)+3), f"v_mov_b32 v{PP(0)+2}, 0", f"v_mov_b32 v{PP(0)+3}, 0")
        else:
            t(cvt(PP(b), SC(b), SC(b)+1), cvt(PP(b)+1, SC(b)+2, SC(b)+3))
            t(f"v_and_b32 v{PP(b)+2}, v{PP(b)}, v{SM}", f"v_and_b32 v{PP(b)+3}, v{PP(b)+1}, v{SM+1}")
            t(f"v_xor_b32 v{PP(b)}, v{PP(b)}, v{PP(b)+2}", f"v_xor_b32 v{PP(b)+1}, v{PP(b)+1}, v{PP(b)+3}")
        t(mfma16(SP(b), ONES, PP(b), "0"), mfma16(OO(b), VB(max(b-1, 0)), PP(b), "0"))
        t(f"v_rcp_f32 v{MX(b)}, v{SP(b)}")
        for r in (0, 2): t(f"v_pk_mul_f32 {vr(OO(b)+r,2)}, {vr(OO(b)+r,2)}, {vr(MX(b),2)} op_sel_hi:[1,0]")
        t(cvt(QB(b), OO(b), OO(b)+1), cvt(QB(b)+1, OO(b)+2, OO(b)+3))
        t(f"ds_write_b64 v176, {vr(QB(b),2)} offset:{L_STG + b*2048}")
    a(*schedule(t.L))
    if o.get("verbose"): print("attention est cycles", schedule.last_cycles)
    a("s_waitcnt lgkmcnt(0)", "s_barrier")
    for j in range(3): a(f"ds_read_b128 {vr(28+4*j,4)}, v177 offset:{L_STG + j*1024}")
    for j in range(3):
        a(f"s_waitcnt lgkmcnt({2-j})", f"buffer_store_dwordx4 {vr(28+4*j,4)}, v{178+j}, {sr(R_WS,4)}, 0 offen{SC1}")
    a("s_branch K_P2C")

    a("K_SPEC:")
    s_ids()
    a("s_lshl_b32 s73, s3, 12", "s_add_u32 s73, s73, 65536")
    a("v_add_u32 v13, s73, v11", "v_add_u32 v14, s73, v12")
    COS, SIN, NCOS = 160, 168, 176
    a("v_cvt_f32_u32 v22, v20", "v_cvt_f32_u32 v23, v21", "v_mul_f32 v23, 4.0, v23")
    for tt in range(2):
        if tt: a("v_add_f32 v22, 0x41800000, v22")
        a("v_mul_f32 v24, 0x3d000000, v22", "v_mul_f32 v26, v24, v23")
        a("v_add_f32 v27, v24, v26", "v_fma_f32 v28, v24, 2.0, v26", "v_fma_f32 v29, v24, 2.0, v27", "v_mul_f32 v25, 0.5, v22")
        for j in range(4): a(f"v_add_f32 v{30+j}, v25, v{26+j}")
        for j in range(8): a(f"v_sin_f32 v{34+j}, v{26+j}", f"v_cos_f32 v{26+j}, v{26+j}")
        for i in range(4):
            a(cvt(COS+4*tt+i, 26+2*i, 27+2*i), cvt(SIN+4*tt+i, 34+2*i, 35+2*i), f"v_xor_b32 v{NCOS+4*tt+i}, 0x80008000, v{COS+4*tt+i}")
    a(f"s_mul_i32 s76, s8, {VP}", "s_lshl_b32 s77, s10, 4", "s_add_u32 s76, s76, s77", f"s_add_u32 s76, s76, {WS_V}")
    a(f"v_mul_u32_u24 v8, {4*16*VP}, v21", "v_lshl_add_u32 v8, v20, 4, v8", "v_add_u32 v8, s76, v8")
    a(f"v_mul_u32_u24 v9, {16*VP}, v1", "s_add_u32 s76, s76, 4096", "v_add_u32 v9, s76, v9")
    XA = lambda s, mt: 16 + 32*(s % 2) + 4*mt
    DB = lambda s, p: 80 + 8*(s % 2) + 4*p
    ACC = lambda mt, p: 96 + 8*mt + 4*p
    def s_reads(s):
        c, ks = s // 2, s % 2; st = slot(c)
        D = [[f"ds_read_b128 {vr(DB(s,p),4)}, v{13+ks} offset:{st*16384 + p*2048}"] for p in range(2)]
        X = [[f"ds_read_b128 {vr(XA(s,mt),4)}, v{11+ks} offset:{st*16384 + mt*2048}"] for mt in range(8)]
        return D[:1] + X[:1] + D[1:] + X[1:]
    def s_mfmas(s):
        return [mfma16(ACC(mt,p), XA(s,mt), DB(s,p), "0" if s == 0 else ACC(mt,p)) for mt in range(8) for p in range(2)]
    mainloop(s_reads, s_mfmas)
    BA = lambda q: 16 + 8*q
    BB = lambda q: 20 + 8*q
    t = Asm(); t(*s_mfmas(15))
    for q in range(4):
        for p, f in ((0, BA), (1, BB)):
            for hf in range(2):
                t(cvt(f(q)+2*hf, ACC(2*q+hf,p), ACC(2*q+hf,p)+1), cvt(f(q)+2*hf+1, ACC(2*q+hf,p)+2, ACC(2*q+hf,p)+3))
    a(*schedule(t.L))
    a("s_cmp_lg_u32 s10, 0", "s_cbranch_scc1 K_NONYQ")
    NA, ND = 48, 52
    for i in range(4): a(f"v_mov_b32 v{NA+i}, v{BB(0)+i}")
    for q in range(1, 4):
        for i in range(4): a(f"v_mov_b32_dpp v{NA+i}, v{BB(q)+i} row_shr:{q} row_mask:0xf bank_mask:0xf")
    for tt in range(2):
        a(mfma16(ND+8*tt, NA, COS+4*tt, "0"), mfma16(ND+8*tt+4, NA, SIN+4*tt, "0"))
    a("s_mov_b32 exec_lo, 0x00010001", "s_mov_b32 exec_hi, 0x00010001")
    for q in range(4):
        for i in range(4): a(f"v_mov_b32 v{BB(q)+i}, 0")
    a("s_mov_b32 exec_lo, 0xffff", "s_mov_b32 exec_hi, 0")
    for tt in range(2):
        for i in range(4): a(cvt(184+4*tt+i, ND+8*tt+2*i, ND+8*tt+2*i+1))
        a(f"s_mov_b32 s76, {tt*16*16*VP}", f"buffer_store_dwordx4 {vr(184+4*tt,4)}, v9, {sr(R_WS,4)}, s76 offen{SC1}")
    a("s_mov_b64 exec, -1", "s_nop 1")
    a("K_NONYQ:", "s_nop 1")
    t = Asm()
    for tt in range(2):
        for q in range(4):
            t(mfma16(ACC(2*q+tt,0), COS+4*tt, BA(q), "0"), mfma16(ACC(2*q+tt,1), SIN+4*tt, BA(q), "0"))
            t(mfma16(ACC(2*q+tt,0), SIN+4*tt, BB(q), ACC(2*q+tt,0)), mfma16(ACC(2*q+tt,1), NCOS+4*tt, BB(q), ACC(2*q+tt,1)))
        for r in range(4):
            d = 48 + 4*(4*tt+r)
            t(cvt(d, ACC(tt,0)+r, ACC(2+tt,0)+r), cvt(d+1, ACC(4+tt,0)+r, ACC(6+tt,0)+r),
              cvt(d+2, ACC(tt,1)+r, ACC(2+tt,1)+r), cvt(d+3, ACC(4+tt,1)+r, ACC(6+tt,1)+r))
            t(f"s_mov_b32 s{76+r%2}, {(16*tt+r)*16*VP}", f"buffer_store_dwordx4 {vr(d,4)}, v8, {sr(R_WS,4)}, s{76+r%2} offen{SC1}")
    a(*schedule(t.L))

    a("K_P2C:")
    a("s_barrier")
    stamp(4)
    p2_ids()
    a("s_mov_b32 s88, 0x3a000000", "s_mov_b32 s89, 0xba000000", "s_cmp_ge_u32 s6, 4", "s_cselect_b32 s13, s88, s89")
    a("s_lshr_b32 s78, s3, 1", "s_and_b32 s79, s3, 1")
    srd(a, R_OUT, P_OUT, 2048*1024)
    a(f"v_mov_b32 v2, {L_CNT}", "v_mov_b32 v3, 1", f"v_lshlrev_b32 v4, {FS+5}, v1", f"s_lshl_b32 s83, s5, {FS}", f"s_add_u32 s83, s83, {WS_FL}")
    a("s_mov_b64 exec, 1", "s_waitcnt vmcnt(0)", "ds_add_rtn_u32 v5, v2, v3", "s_waitcnt lgkmcnt(0)", "v_readfirstlane_b32 s84, v5", "s_mov_b64 exec, 0xff",
      "s_cmp_lg_u32 s84, 3", "s_cbranch_scc1 K_NOSIG", f"buffer_atomic_add v3, v4, {sr(R_WS,4)}, s83 offen{SC1}", "K_NOSIG:", "s_mov_b64 exec, -1")
    stamp(5)
    WF = lambda ks: 16 + 4*ks
    VF = lambda ks: 48 + 4*ks
    AA, AB = 80, 96
    WO = lambda kk: 112 + 4*kk
    OF = lambda c, ks: 48 + 16*(c % 2) + 4*ks
    a("v_and_b32 v2, 31, v1", "v_lshrrev_b32 v3, 5, v1")
    a("v_and_b32 v240, 15, v1", "v_lshrrev_b32 v241, 2, v240", "v_lshl_add_u32 v241, v3, 3, v241", "v_lshlrev_b32 v241, 7, v241")
    a("v_lshrrev_b32 v242, 3, v240", "v_xor_b32 v242, s79, v242", "v_lshl_add_u32 v241, v242, 6, v241")
    a("v_bfe_u32 v242, v1, 4, 1", "v_lshl_add_u32 v241, v242, 5, v241", "v_and_b32 v242, 3, v1", "v_lshl_add_u32 v241, v242, 3, v241", f"v_add_u32 v15, {L_WO}, v241")
    rd = [[f"ds_read_b64_tr_b16 {vr(WO(4*c+ks)+2*sub,2)}, v15 offset:{c*8192 + (16*ks+4*sub)*128}"] for c in range(8) for ks in range(4) for sub in range(2)]
    t = Asm()
    t("s_lshl_b32 s76, s78, 5", "v_add_u32 v4, s76, v2", "v_lshlrev_b32 v5, 5, v4", "v_add_u32 v5, s8, v5")
    t("v_cvt_f32_u32 v240, v5", "v_mul_f32 v240, s13, v240", "v_cvt_f32_u32 v241, v3", "v_mul_f32 v241, 4.0, v241", "v_mul_f32 v241, v241, v240")
    t("v_mul_f32 v242, 0x41000000, v240")
    for ks in range(8):
        if ks: t("v_add_f32 v241, v241, v242")
        t("v_add_f32 v243, v241, v240", "v_fma_f32 v244, v240, 2.0, v241", "v_fma_f32 v245, v240, 2.0, v243")
        T = [241, 243, 244, 245]
        for j in range(4): t(f"v_cos_f32 v{246+j}, v{T[j]}", f"v_sin_f32 v{VF(0)+j}, v{T[j]}")
        t(cvt(WF(ks), 246, 247), cvt(WF(ks)+1, 248, 249), cvt(WF(ks)+2, VF(0), VF(0)+1), cvt(WF(ks)+3, VF(0)+2, VF(0)+3))
    t("v_lshrrev_b32 v240, 1, v2", "v_and_b32 v240, 7, v240", "v_xor_b32 v240, v240, v3", "v_lshlrev_b32 v240, 4, v240", "v_lshl_or_b32 v6, v4, 7, v240")
    for ks in range(1, 4): t(f"v_xor_b32 v{6+ks}, {32*ks}, v6")
    t("s_lshl_b32 s76, s79, 9", f"s_add_u32 s76, s76, {L_V}", "v_lshlrev_b32 v240, 4, v2", "v_lshl_add_u32 v240, v3, 10, v240", "v_add_u32 v10, s76, v240")
    t("s_lshl_b32 s76, s79, 2", "v_and_b32 v240, 7, v4", "v_xor_b32 v240, s76, v240", "v_lshlrev_b32 v240, 4, v240", "v_lshl_or_b32 v240, v4, 7, v240",
      "v_lshl_or_b32 v240, v3, 3, v240", f"v_add_u32 v11, {L_O}, v240")
    t("s_lshl_b32 s76, s3, 11", "v_lshlrev_b32 v240, 4, v1", "v_add_u32 v12, s76, v240")
    t("v_lshrrev_b32 v241, 3, v1", "v_and_b32 v242, 7, v1", "v_xor_b32 v240, v241, v242", "v_lshlrev_b32 v240, 4, v240", "v_lshl_add_u32 v240, v241, 15, v240",
      "s_lshl_b32 s76, s3, 19", "s_lshl_b32 s77, s8, 10", "s_add_u32 s76, s76, s77", "s_lshl_b32 s77, s6, 7", "s_add_u32 s76, s76, s77",
      "v_add_u32 v13, s76, v240", f"v_add_u32 v14, {8*32768}, v13")
    t("v_lshlrev_b32 v5, 2, v5", f"s_mov_b32 s76, {WS_G}")
    nb = len(t.L) - 2*len(rd) if o.get("wolate", 1) else 0
    nb = max(nb, 0)
    a(*t.L[:nb]); a("s_barrier")
    L = []
    for i, x in enumerate(t.L[nb:]):
        L.append(x)
        if i % 2 == 1 and rd: L += rd.pop(0)
    while rd: L += rd.pop(0)
    a(*L)
    a("s_waitcnt lgkmcnt(0)")
    stamp(6)
    a("s_barrier")
    stamp(7)
    a(f"buffer_load_dword v242, v5, {sr(R_WS,4)}, s76 offen{SC1}")
    ordr = lambda c: [f"ds_read_b128 {vr(OF(c,ks),4)}, v{6+ks} offset:{L_O + c*8192}" for ks in range(4)]
    omf = lambda c: [mfma32(AB, WO(4*c+ks), OF(c,ks), "0" if (c == 0 and ks == 0) else AB) for ks in range(4)]
    a("s_barrier"); stamp(8)
    a(*ordr(0))
    for c in range(1, 8):
        a("s_barrier")
        a(*ordr(c), "s_waitcnt lgkmcnt(4)")
        a(*omf(c-1))
    vrd = [f"ds_read_b128 {vr(VF(ks),4)}, v10 offset:{ks*2048}" for ks in range(8)]
    a("s_waitcnt lgkmcnt(0)", *omf(7)[:2])
    a("s_barrier"); stamp(9)
    a(*vrd[:4], *omf(7)[2:], *vrd[4:], "s_waitcnt vmcnt(0)", "v_sub_f32 v244, 1.0, v242")
    for ks in range(8):
        a(f"s_waitcnt lgkmcnt({7-ks})", mfma32(AA, VF(ks), WF(ks), "0" if ks == 0 else AA))
        if ks >= 4: a(*[f"v_pk_mul_f32 {vr(AB+2*i,2)}, {vr(AB+2*i,2)}, v[244:245] op_sel_hi:[1,0]" for i in (2*ks-8, 2*ks-7)])
    for i in range(0, 8, 2):
        for k in (i, i+1): a(f"v_pk_fma_f32 {vr(AA+2*k,2)}, {vr(AA+2*k,2)}, v[242:243], {vr(AB+2*k,2)} op_sel_hi:[1,0,1]")
        if i: a(f"v_xor_b32 v240, {8*i}, v11")
        a(cvt(16+i, AA+2*i, AA+2*i+1), cvt(17+i, AA+2*i+2, AA+2*i+3))
        a(f"ds_write_b64 v{240 if i else 11}, {vr(16+i,2)}")
    a("s_waitcnt lgkmcnt(0)", "s_barrier")
    for j in range(2): a(f"ds_read_b128 {vr(24+4*j,4)}, v12 offset:{j*1024}")
    osc = " sc1" if o.get("outsc1") else (" nt" if o.get("outnt") else "")
    for j in range(2): a(f"s_waitcnt lgkmcnt({1-j})", f"buffer_store_dwordx4 {vr(24+4*j,4)}, v{13+j}, {sr(R_OUT,4)}, 0 offen{osc}")
    stamp(10)
    stamps_out(11)
    a("K_END:", "s_endpgm")
    return a.L

def k3probe(o):
    a = Asm(); p = o["probe"]
    a("s_cmp_lg_u32 s2, 0", "s_cbranch_scc1 K3_END")
    a("s_load_dwordx2 s[38:39], s[0:1], 88", "s_waitcnt lgkmcnt(0)")
    srd(a, R_WS, P_WS, WS_SIZE)
    a("v_and_b32 v1, 63, v0", "v_lshlrev_b32 v2, 2, v1", "v_bfe_u32 v3, v1, 0, 2", "v_add_u32 v2, v2, v3", "v_lshlrev_b32 v1, 10, v2", "v_mov_b32 v2, 0")
    a(f"s_mov_b32 s4, {WS_ST + 128*o.get('pwave', 0)}")
    if p == 1:
        a(f"buffer_load_dword v3, v2, {sr(R_WS,4)}, s4 offen offset:120", f"buffer_load_dword v4, v1, {sr(R_WS,4)}, s4 offen offset:124")
    else:
        a(f"buffer_load_dword v3, v1, {sr(R_WS,4)}, s4 offen offset:{4*o.get('pb', 0)}", f"buffer_load_dword v4, v1, {sr(R_WS,4)}, s4 offen offset:{4*o.get('pa', 0)}")
    a("s_waitcnt vmcnt(0)", "v_sub_u32 v4, v4, v3")
    op = "v_max_i32_dpp"
    for sh in (1, 2, 4, 8): a(f"{op} v4, v4, v4 row_shr:{sh} row_mask:0xf bank_mask:0xf")
    a(f"{op} v4, v4, v4 row_bcast:15 row_mask:0xa bank_mask:0xf", f"{op} v4, v4, v4 row_bcast:31 row_mask:0xc bank_mask:0xf")
    a("s_nop 1", "v_readlane_b32 s6, v4, 63", "s_nop 3", "s_max_i32 s6, s6, 0", "s_min_i32 s6, s6, 30000", f"s_mul_i32 s6, s6, {10 if p == 1 else (1 if p == 2 else 0)}")
    a("s_memrealtime s[8:9]", "s_waitcnt lgkmcnt(0)", "K3_LOOP:", "s_memrealtime s[10:11]", "s_waitcnt lgkmcnt(0)", "s_sub_u32 s10, s10, s8", "s_cmp_lt_u32 s10, s6", "s_cbranch_scc1 K3_LOOP")
    a("K3_END:", "s_endpgm")
    return a.L

def kd(name, vg):
    return f""".amdhsa_kernel {name}
  .amdhsa_next_free_vgpr {vg}
  .amdhsa_next_free_sgpr 102
  .amdhsa_accum_offset {vg}
  .amdhsa_group_segment_fixed_size 0
  .amdhsa_kernarg_size 96
  .amdhsa_user_sgpr_count 2
  .amdhsa_user_sgpr_kernarg_segment_ptr 1
  .amdhsa_system_sgpr_workgroup_id_x 1
.end_amdhsa_kernel
"""

def build(o):
    hdr = [l for l in open(f"cdna_kernels/{NAME}.s.ref").read().split("\n") if l.startswith(";") and "@launch" not in l and "Override" not in l and "grid=ceil" not in l]
    ks = [(KN, kernel(o))]
    if o.get("probe"):
        out = hdr + [f"; @launch kernel={KN} grid=(256,1,1) block=(512,1,1) lds={LDS}", "; @launch kernel=k3_kernel grid=(256,1,1) block=(256,1,1) lds=0"]
        ks.append(("k3_kernel", k3probe(o)))
    elif o.get("aslist"): out = hdr + [f"; @launch kernel={KN} grid=(256,1,1) block=(512,1,1) lds={LDS}"]
    else: out = hdr + [f"; @launch grid=(256,1,1) block=(512,1,1) lds={LDS}"]
    out += ['.amdgcn_target "amdgcn-amd-amdhsa--gfx950"', ".text"]
    for n, L in ks:
        out += [f".globl {n}", ".p2align 8", f".type {n},@function", f"{n}:"]
        out += ["    " + x if not x.endswith(":") else x for x in fix_hazards(L, verbose=o.get("verbose"))]
        if n == KN: out.append("CODE_END:")
    out += ['.section .rodata,"a"']
    for n, L in ks: out += [".p2align 6", kd(n, 256)]
    return "\n".join(out) + "\n"

if __name__ == "__main__":
    o = {}
    path = f"cdna_kernels/{NAME}.s"
    for x in sys.argv[1:]:
        if "=" in x:
            k, v = x.split("="); o[k] = int(v)
        else: path = x
    o["verbose"] = 1
    open(path, "w").write(build(o))
    print("wrote", path)
```

```python
import re

TRANS = ("v_exp_f32", "v_log_f32", "v_rcp_f32", "v_rsq_f32", "v_sqrt_f32", "v_sin_f32", "v_cos_f32", "v_rcp_iflag_f32")
_REG = re.compile(r"^-?(?:abs\()?\|?([vsa])(?:(\d+)|\[(\d+):(\d+)\])\)?\|?$")

def regs(tok):
    tok = tok.strip()
    if tok in ("vcc",): return {"s106", "s107"}
    if tok == "vcc_lo": return {"s106"}
    if tok == "vcc_hi": return {"s107"}
    if tok == "exec": return {"exec"}
    if tok in ("exec_lo", "exec_hi"): return {"exec"}
    if tok == "m0": return {"m0"}
    m = _REG.match(tok)
    if not m: return set()
    f = m.group(1)
    if m.group(2) is not None: return {f + m.group(2)}
    return {f + str(i) for i in range(int(m.group(3)), int(m.group(4)) + 1)}

def split_ops(s):
    out, depth, cur = [], 0, ""
    for ch in s:
        if ch in "[(": depth += 1
        if ch in "])": depth -= 1
        if ch == "," and depth == 0:
            out.append(cur.strip()); cur = ""
        else: cur += ch
    if cur.strip(): out.append(cur.strip())
    return out

class Ins:
    def __init__(self, text):
        self.text = text
        t = text.split(";")[0].strip()
        self.is_label = t.endswith(":")
        self.is_dir = t.startswith(".") or t == ""
        self.mn = ""; self.w = set(); self.r = set(); self.ws = 1
        self.kind = None
        if self.is_label or self.is_dir:
            self.ws = 0; return
        p = t.split(None, 1)
        mn = p[0]; self.mn = mn
        rest = p[1] if len(p) > 1 else ""
        ops = split_ops(rest)
        mods = ""
        if ops:
            last = ops[-1].split()
            ops[-1] = last[0]; mods = " ".join(last[1:])
        self.mods = mods; self.ops = ops
        R = lambda i: regs(ops[i]) if i < len(ops) else set()
        allr = lambda a: set().union(*[R(i) for i in range(a, len(ops))]) if a < len(ops) else set()
        base = re.sub(r"_(e32|e64|dpp|sdwa)$", "", mn); self.base = base
        self.dpp = mn.endswith("_dpp") or "row_" in mods or "quad_perm" in mods
        if mn == "s_nop":
            self.kind = "nop"; self.ws = int(ops[0], 0) + 1
        elif mn.startswith("v_mfma"):
            self.kind = "mfma"; self.w = R(0); self.A = R(1); self.B = R(2); self.C = R(3); self.r = self.A | self.B | self.C
            self.passes = 8 if "32x32" in mn else 4
        elif mn.startswith("v_"):
            self.kind = "valu"
            if base.startswith("v_permlane") and "swap" in base:
                self.w = R(0) | R(1); self.r = R(0) | R(1)
            elif base.startswith("v_cmp"):
                self.w = R(0); self.r = allr(1)
                if base.startswith("v_cmpx"): self.w |= {"exec"}
            elif base in ("v_add_co_u32", "v_sub_co_u32", "v_addc_co_u32", "v_subb_co_u32"):
                self.w = R(0) | R(1); self.r = allr(2)
            else:
                self.w = R(0); self.r = allr(1)
                if base in ("v_fmac_f32", "v_dot2c_f32_bf16", "v_writelane_b32") or self.dpp: self.r |= R(0)
                if base == "v_cndmask_b32" and len(ops) == 3: self.r |= {"s106", "s107"}
            self.trans = base in TRANS
            self.dot = base.startswith("v_dot")
        elif mn.startswith("ds_"):
            self.kind = "ds"
            if mn.startswith("ds_read") or mn.startswith("ds_bpermute") or mn.startswith("ds_swizzle") or "_rtn_" in mn:
                self.w = R(0); self.r = allr(1)
            else: self.r = allr(0)
        elif mn.startswith("buffer_") or mn.startswith("global_"):
            self.kind = "vmem"
            self.lds = (" lds" in " " + mods) or "_lds_" in mn
            if mn.startswith("buffer_load") and not self.lds:
                self.w = R(0); self.r = allr(1)
            elif mn.startswith("global_load") and not self.lds:
                self.w = R(0); self.r = allr(1)
            else:
                self.r = allr(0)
                if "atomic" in mn and "sc0" in mods: self.w = R(0)
            if self.lds: self.r |= {"m0"}
            self.wide_store = ("store" in mn) and ("x4" in mn or "x3" in mn)
            self.data = R(0) if mn.startswith("buffer_store") else (R(1) if mn.startswith("global_store") else set())
        elif mn.startswith("s_"):
            self.kind = "salu"
            nodst = ("s_cmp", "s_waitcnt", "s_barrier", "s_branch", "s_cbranch", "s_endpgm", "s_setprio", "s_sleep", "s_bitcmp", "s_setpc")
            if mn.startswith(nodst): self.r = allr(0)
            else:
                self.w = R(0); self.r = allr(1)
                if "saveexec" in mn: self.w |= {"exec"}
        else:
            raise ValueError("unknown instruction: " + text)

def need(p, c):
    n = 0
    vw = {x for x in p.w if x[0] in "va" and x != "vcc"}
    sw = {x for x in p.w if x[0] == "s"}
    if p.kind == "valu":
        if c.kind == "mfma" and vw & c.r: n = max(n, 2)
        if c.kind == "valu":
            if vw & c.r:
                if p.trans and not c.trans: n = max(n, 1)
                if c.dpp: n = max(n, 2)
                if c.base.startswith("v_permlane"): n = max(n, 2)
                if c.base in ("v_readlane_b32", "v_readfirstlane_b32"): n = max(n, 1)
            if p.dot and (vw & (c.r | c.w)):
                same_c = c.dot and c.base == p.base and not (vw & (regs(c.ops[1]) | regs(c.ops[2])))
                if not same_c: n = max(n, 3)
            if sw & c.r: n = max(n, 4 if c.base in ("v_readlane_b32", "v_writelane_b32") else 2)
            if "exec" in p.w: n = max(n, 5 if c.dpp else 4)
        if p.dot and c.kind in ("mfma", "ds", "vmem") and vw & (c.r | c.w): n = max(n, 3)
        if c.kind == "vmem" and sw & c.r: n = max(n, 5)
        if c.kind == "mfma" and "exec" in p.w: n = max(n, 4)
        if p.trans and c.kind in ("ds", "vmem") and vw & c.r: n = max(n, 1)
    if p.kind == "salu" and "m0" in p.w and c.kind == "vmem" and getattr(c, "lds", False): n = max(n, 1)
    if p.kind == "mfma":
        big = {4: 8, 8: 12}[p.passes]
        if c.kind == "mfma":
            if p.w & (c.A | c.B): n = max(n, big)
            if p.w & c.C:
                if not (p.w == c.C and p.passes == c.passes): n = max(n, {4: 6, 8: 10}[p.passes])
        elif c.kind in ("valu", "ds", "vmem"):
            if p.w & (c.r | c.w): n = max(n, big)
            if c.kind == "valu" and p.C & c.w: n = max(n, {4: 3, 8: 7}[p.passes])
    if p.kind == "vmem" and getattr(p, "wide_store", False) and p.data & c.w:
        n = max(n, 2 if c.kind == "valu" else 1)
    return n

def fix_hazards(lines, verbose=False):
    out, hist, added = [], [], 0
    for text in lines:
        c = Ins(text)
        if c.ws == 0:
            out.append(text); continue
        if c.kind != "nop":
            dist, pad = 0, 0
            for p in reversed(hist):
                if dist >= 20: break
                if p.kind != "nop":
                    pad = max(pad, need(p, c) - dist)
                dist += p.ws
            if pad > 0:
                added += pad
                while pad > 0:
                    k = min(pad, 16)
                    nop = Ins(f"s_nop {k-1}")
                    out.append(nop.text); hist.append(nop); pad -= k
        out.append(text); hist.append(c)
        if len(hist) > 40: hist = hist[-40:]
    if verbose: print("hazard nops added:", added)
    return out

class Asm:
    def __init__(self): self.L = []
    def __call__(self, *texts):
        for t in texts:
            for x in t.split("\n"):
                x = x.strip()
                if x: self.L.append(x)
    def lines(self): return self.L

def vr(a, n=1): return f"v{a}" if n == 1 else f"v[{a}:{a+n-1}]"
def sr(a, n=1): return f"s{a}" if n == 1 else f"s[{a}:{a+n-1}]"

def interleave(main, fill, start=0, per=1):
    out = []; fi = 0
    for i, m in enumerate(main):
        out.append(m)
        if i >= start:
            for _ in range(per):
                if fi < len(fill):
                    out.extend(fill[fi]); fi += 1
    while fi < len(fill):
        out.extend(fill[fi]); fi += 1
    return out

LATP = dict(mf=40, tr=24, va=12, vm=20)
def _cost(i):
    if i.kind == "mfma": return 8
    if i.kind == "valu" and (i.trans or i.base.startswith("v_permlane")): return 8
    return 4
def _lat(p, c):
    n = need(p, c)
    base = _cost(p) + 4*n
    if p.kind == "mfma" and (p.w & (c.r | c.w)):
        if c.kind == "mfma" and p.w == c.C and not (p.w & (c.A | c.B)): base = max(base, 4*p.passes)
        else: base = max(base, 4*p.passes + LATP["mf"])
    if p.kind == "valu" and p.trans and (p.w & c.r): base = max(base, LATP["tr"])
    if p.kind == "valu" and (p.w & c.r): base = max(base, LATP["va"] if c.kind == "valu" else LATP["vm"])
    return base

def schedule(lines, pre=(), keep_order=lambda t: False, seed=None, jitter=0):
    ins = [Ins(t) for t in lines]
    n = len(ins)
    for i in ins: assert i.kind in ("valu", "mfma", "ds", "salu", "vmem"), i.text
    succ = [[] for _ in range(n)]; npred = [0]*n
    scc = lambda i: i.kind == "salu"
    for j in range(n):
        for i in range(j):
            a, b = ins[i], ins[j]
            dep = (a.w & (b.r | b.w)) or (a.r & b.w) or (scc(a) and scc(b)) or (a.kind == "vmem" and b.kind == "vmem") \
                  or (keep_order(a.text) and keep_order(b.text)) or ("exec" in a.w) or ("exec" in b.w)
            if dep:
                raw = a.w & (b.r | b.w) or (a.kind == "mfma" and a.C & b.w)
                succ[i].append((j, _lat(a, b) if raw else _cost(a))); npred[j] += 1
    prio = [0]*n
    for i in range(n-1, -1, -1):
        prio[i] = max([l + prio[j] for j, l in succ[i]] + [_cost(ins[i])])
    if seed is not None:
        import random
        rnd = random.Random(seed)
        prio = [p + rnd.uniform(0, jitter) for p in prio]
    ready_at = [0]*n
    t0 = -4*len(pre)
    for k, p in enumerate(pre):
        p = Ins(p)
        if p.ws == 0 or p.kind == "nop": continue
        for j in range(n):
            if p.w & (ins[j].r | ins[j].w): ready_at[j] = max(ready_at[j], t0 + 4*k + _lat(p, ins[j]))
    avail = [i for i in range(n) if npred[i] == 0]
    t, mf_free, out = 0, 0, []
    while avail:
        def start(i): return max(t, ready_at[i], mf_free if (ins[i].kind == "mfma" or ins[i].mn.startswith("v_pk_")) else 0)
        now = [i for i in avail if start(i) <= t]
        pick = max(now, key=lambda i: (prio[i], -i)) if now else min(avail, key=lambda i: (start(i), -prio[i]))
        t = start(pick)
        out.append(lines[pick]); avail.remove(pick)
        if ins[pick].kind == "mfma": mf_free = t + 4*ins[pick].passes
        for j, l in succ[pick]:
            ready_at[j] = max(ready_at[j], t + l); npred[j] -= 1
            if npred[j] == 0: avail.append(j)
        t += _cost(ins[pick])
    assert len(out) == n
    schedule.last_cycles = t
    return out
```

```python
import sys
sys.path.insert(0, "work")
from asmlib import *

NAME = "gated_mix__spectral_fnet__sliding_local_dilated__prompt"
KN = NAME + "_kernel"
WS_O, WS_V, WS_G, WS_FL, WS_ST = 0, 0x210000, 0x440000, 0x450000, 0x460000
OP = 262144 + 128
VP = 4224
WS_SIZE = 0x4C0000
NEG = 0xF149F2CA
SCL = 0x3EB8AA3B
LDS = 163840
L_O, L_WO, L_V, L_STG, L_CNT = 0, 81920, 147456, 12288, 147456

P_X, P_SRE, P_SIM, P_HRE, P_HIM, P_BX, P_WQ, P_WO, P_GW, P_OUT, P_DBG, P_WS = range(16, 40, 2)
R_X, R_WQ, R_HRE, R_HIM, R_GW, R_WS, R_CODE, R_WO, R_OUT = range(40, 76, 4)
R_DBG = R_CODE

def srd(a, r, p, size, delta=0):
    if delta: a(f"s_sub_u32 s{r}, s{p}, {delta}", f"s_subb_u32 s{r+1}, s{p+1}, 0")
    else: a(f"s_mov_b64 {sr(r,2)}, {sr(p,2)}")
    a(f"s_mov_b32 s{r+2}, {size+delta}", f"s_mov_b32 s{r+3}, 0x20000")

def mfma16(d, x, y, c): return f"v_mfma_f32_16x16x32_bf16 {vr(d,4)}, {vr(x,4)}, {vr(y,4)}, {c if isinstance(c,str) else vr(c,4)}"
def mfma32(d, x, y, c): return f"v_mfma_f32_32x32x16_bf16 {vr(d,16)}, {vr(x,4)}, {vr(y,4)}, {c if isinstance(c,str) else vr(c,16)}"
def cvt(d, x, y): return f"v_cvt_pk_bf16_f32 v{d}, v{x}, v{y}"

def kernel(o):
    a = Asm()
    SC1 = " sc1"
    def stamp(k, rt=None):
        if not o.get("stamp"): return
        a("s_memtime s[96:97]")
        if rt is not None: a("s_memrealtime s[98:99]")
        a("s_waitcnt lgkmcnt(0)", f"v_writelane_b32 v255, s96, {k}")
        if rt is not None: a(f"v_writelane_b32 v255, s98, {rt}")
    def stamps_out(k):
        if not o.get("stamp"): return
        a("s_waitcnt vmcnt(0)"); stamp(k, 31)
        a("s_lshl_b32 s96, s2, 3", "s_add_u32 s96, s96, s3", "s_lshl_b32 s96, s96, 7", f"s_add_u32 s96, s96, {WS_ST}",
          "v_lshlrev_b32 v254, 2, v1", "s_mov_b32 exec_hi, 0", f"buffer_store_dword v255, v254, {sr(R_WS,4)}, s96 offen")
    slot = lambda c: (c + 1) % 4

    stamp(0, 30)
    a("s_load_dwordx16 s[16:31], s[0:1], 0", "s_load_dwordx8 s[32:39], s[0:1], 64")
    a(f"s_getpc_b64 {sr(R_CODE,2)}", "K_PC:")
    a("v_lshrrev_b32 v15, 6, v0", "v_and_b32 v1, 63, v0")
    a("s_cmp_ge_u32 s2, 256", "s_cbranch_scc1 K_END")
    a("v_readfirstlane_b32 s3, v15")
    a("s_and_b32 s4, s2, 7", "s_lshr_b32 s5, s2, 3", "v_lshrrev_b32 v16, 3, v1", "v_and_b32 v17, 7, v1", "v_lshlrev_b32 v19, 4, v1")
    a("s_lshr_b32 s9, s5, 2", "s_and_b32 s11, s5, 3", "s_and_b32 s15, s3, 3")
    def q_ids():
        a("s_lshr_b32 s8, s4, 1", "s_lshl_b32 s8, s8, 3", "s_add_u32 s8, s8, s9", "s_and_b32 s10, s4, 1", "s_lshl_b32 s10, s10, 2", "s_add_u32 s10, s10, s11")
        a("s_lshr_b32 s12, s8, 1", "s_mul_i32 s12, s12, 85", "s_and_b32 s13, s8, 1", "s_lshl_b32 s14, s12, 1", "s_add_u32 s14, s14, s13", "s_lshl_b32 s14, s14, 10")
    a("s_cmp_lt_u32 s3, 4", "s_cbranch_scc1 K_COMP")
    if o.get("lprio", 3): a(f"s_setprio {o.get('lprio', 3)}")
    a("s_lshl_b32 s6, s5, 2", "s_add_u32 s6, s6, s15")
    if o.get("codepf", 1):
        a(f"s_mov_b32 s{R_CODE+2}, CODE_END-K_PC", f"s_mov_b32 s{R_CODE+3}, 0x20000", "v_lshrrev_b32 v2, 5, v1", "s_lshl_b32 s7, s6, 8", "v_lshlrev_b32 v2, 7, v2")
        a(f"buffer_load_dword v252, v2, {sr(R_CODE,4)}, s7 offen")
    a("s_lshl_b32 s8, s4, 5", "s_add_u32 s8, s8, s5", "s_mul_i32 s12, s8, 171", "s_lshr_b32 s12, s12, 10", "s_mul_i32 s10, s12, 6", "s_sub_u32 s10, s8, s10",
      "s_cmp_ge_u32 s10, 3", "s_addc_u32 s10, s10, 1", "s_lshl_b32 s12, s12, 3", "s_add_u32 s12, s12, s10")
    a("s_lshl_b32 s10, s5, 1", "s_add_u32 s10, s10, s4", "s_sub_u32 s10, s10, 6", "s_lshl_b32 s10, s10, 2")
    a("s_lshr_b32 s13, s4, 1", "s_lshl_b32 s13, s13, 7", "s_add_u32 s13, s13, s6", "s_lshl_b32 s13, s13, 3", "s_and_b32 s14, s4, 1", "s_add_u32 s13, s13, s14", "s_lshl_b32 s13, s13, 9",
      "s_lshl_b32 s14, s6, 11")
    a("s_cmp_ge_u32 s4, 6", "s_cselect_b32 s12, s10, s12", "s_cselect_b32 s93, s14, s13", "s_cselect_b32 s13, 9, 10")
    a("s_lshl_b32 s12, s12, 2", "s_add_u32 s12, s12, s15", "s_lshl_b32 s92, s12, 1", "s_lshl_b32 s7, s12, 11")
    a("v_lshrrev_b32 v3, 4, v1", "v_lshlrev_b32 v3, s13, v3", "v_bfe_u32 v4, v1, 2, 2", "v_lshl_add_u32 v20, v4, 7, v3")
    a("v_lshrrev_b32 v18, 1, v16", "v_xor_b32 v18, v17, v18", "v_lshlrev_b32 v18, 4, v18")
    q_ids()
    a("s_mul_i32 s76, s15, 49152", "s_add_u32 s77, s76, s14", "s_and_b32 s78, s15, 1", "s_lshl_b32 s78, s78, 6")
    a("v_xor_b32 v2, s78, v18", "v_lshl_add_u32 v2, v16, 11, v2", "v_add_u32 v2, s77, v2")
    a("s_movk_i32 s77, 15360", "v_xad_u32 v3, v2, 64, s77", "v_add_u32 v4, 30720, v2")
    a("s_lshl_b32 s77, s10, 7", "s_add_u32 s76, s76, s77")
    wcalc = []
    for j in range(3):
        wcalc += [f"v_add_u32 v22, {8*j}, v16", "v_mul_u32_u24 v23, 43, v22", "v_lshrrev_b32 v24, 7, v23", "v_and_b32 v24, 2, v24",
          "v_lshrrev_b32 v23, 8, v23", "v_and_or_b32 v23, v23, 4, v24", "v_xor_b32 v23, v23, v17",
          "v_lshlrev_b32 v23, 4, v23", f"v_subrev_u32 v22, {j}, v22", "v_lshl_add_u32 v23, v22, 10, v23", f"v_add_u32 v{5+j}, s76, v23"]
    wcalc += ["s_movk_i32 s77, 24576"] + [f"v_xad_u32 v{8+j}, v{5+j}, 64, s77" for j in range(3)]
    if o.get("wearly", 1): a(*wcalc)
    a("v_lshrrev_b32 v13, 4, v1", "v_lshlrev_b32 v13, 7, v13", "s_lshl_b32 s95, s2, 2", "s_add_u32 s95, s95, s15", "s_lshl_b32 s95, s95, 9")
    if o.get("slowt", 1):
        a("v_lshrrev_b32 v21, 2, v1", "v_min_u32 v21, 11, v21", "v_lshlrev_b32 v21, 10, v21", "s_mul_i32 s94, s6, 12288", "s_add_u32 s94, s94, 384",
          "s_bitcmp1_b32 0x15, s4", "s_cselect_b32 s94, s94, 0x7ff00000")
    a("s_waitcnt lgkmcnt(0)")
    srd(a, R_X, P_X, 2048*1024)
    tnt = " nt" if o.get("touchnt") else ""
    a(f"buffer_load_dwordx4 v[240:243], v19, {sr(R_X,4)}, s7 offen{tnt}", f"buffer_load_dwordx4 v[244:247], v19, {sr(R_X,4)}, s7 offen offset:1024{tnt}")
    a("s_cmp_eq_u32 s4, 6", f"s_cselect_b64 {sr(R_WQ,2)}, {sr(P_HRE,2)}, {sr(P_HIM,2)}", "s_mov_b32 s77, 0x180000",
      "s_cmp_ge_u32 s4, 6", f"s_cselect_b64 {sr(R_WQ,2)}, {sr(R_WQ,2)}, {sr(P_WQ,2)}", f"s_cselect_b32 s{R_WQ+2}, 0x80000, s77", f"s_mov_b32 s{R_WQ+3}, 0x20000")
    if o.get("touch", 1): a(f"buffer_load_dword v252, v20, {sr(R_WQ,4)}, s93 offen{tnt}")
    if o.get("wot", 1):
        srd(a, R_WO, P_WO, 512*1024)
        a(f"buffer_load_dword v252, v13, {sr(R_WO,4)}, s95 offen")
    if o.get("diag0"):
        stamp(16)
        for k in (3, 2, 1, 0): a(f"s_waitcnt vmcnt({k})"); stamp(20-k)
        a("s_cmp_ge_u32 s4, 6")
    a("s_cbranch_scc1 K_SLOAD")
    if o.get("slowt", 1): a(f"buffer_load_dword v252, v21, {sr(R_WQ,4)}, s94 offen")

    def rot(r):
        if r == 0: a("s_mov_b32 s76, 0")
        elif r == 1: a("s_lshl_b32 s76, s11, 8")
        elif r == 2: a("s_lshl_b32 s76, s11, 1", "s_add_u32 s76, s76, s9", "s_and_b32 s76, s76, 7", "s_lshl_b32 s76, s76, 7")
    def gate():
        R = (252, 253)
        a("v_mov_b32 v252, 0", "v_mov_b32 v253, 0")
        for i in range(4): a(f"v_dot2c_f32_bf16 v252, v{240+i}, v{248+i}", f"v_dot2c_f32_bf16 v253, v{244+i}, v{248+i}")
        a("s_lshl_b32 s90, s92, 2", f"s_add_u32 s90, s90, {WS_G}", "v_cmp_eq_u32 vcc, 63, v1", "v_mov_b32 v244, 0x80000000")
        for sh in (1, 2, 4, 8):
            for r in R: a(f"v_add_f32_dpp v{r}, v{r}, v{r} row_shr:{sh} row_mask:0xf bank_mask:0xf bound_ctrl:1")
        for r in R: a(f"v_add_f32_dpp v{r}, v{r}, v{r} row_bcast:15 row_mask:0xa bank_mask:0xf")
        for r in R: a(f"v_add_f32_dpp v{r}, v{r}, v{r} row_bcast:31 row_mask:0xc bank_mask:0xf")
        a("v_cndmask_b32_e64 v244, v244, 0, vcc")
        for op in ("v_mul_f32 v{0}, 0xbfb8aa3b, v{0}", "v_exp_f32 v{0}, v{0}", "v_add_f32 v{0}, 1.0, v{0}", "v_rcp_f32 v{0}, v{0}"):
            for r in R: a(op.format(r))
        a(f"buffer_store_dwordx2 v[252:253], v244, {sr(R_WS,4)}, s90 offen{SC1}")
    def early0(n, lab):
        if o.get("early0", 0): a("s_cmp_lg_u32 s80, 1", f"s_cbranch_scc1 {lab}", f"s_waitcnt vmcnt({n})", "s_barrier", f"{lab}:")
    def loop_tail(n, lab):
        a("s_add_u32 s80, s80, 1", f"s_cmp_le_u32 s80, {2 if o.get('early0', 0) else 1}", f"s_cbranch_scc1 {lab}")
        a(f"s_waitcnt vmcnt({n})", "s_barrier")
        if o.get("stamp", 0) == 2: a("s_memtime s[96:97]", "s_waitcnt lgkmcnt(0)", "s_mov_b32 m0, s80", "s_nop 0", "v_writelane_b32 v255, s96, m0")
        a("s_cmp_lt_u32 s80, 8", f"s_cbranch_scc1 {lab}")

    if not o.get("wearly", 1): a(*wcalc)
    rot(o.get("rotq", 0))
    a("s_mul_i32 s78, s15, 3072", "s_add_u32 s81, s78, 49152", "s_lshl_b32 s79, s78, 1", "s_add_u32 s78, s78, 12288", f"s_add_u32 s79, s79, {49152+24576}", "s_mov_b32 s80, 0")
    stamp(1)
    a("K_QL:")
    a("s_mov_b32 m0, s78", "s_mul_i32 s77, s76, 1536")
    for j in range(3): a(f"buffer_load_dwordx4 v{2+j}, {sr(R_X,4)}, s76 offen" + (f" offset:{1024*j}" if j else "") + " lds")
    early0(3, "K_QL0")
    a("s_mov_b32 m0, s79", "s_add_u32 s76, s76, 128")
    for j in range(3): a(f"buffer_load_dwordx4 v{5+j}, {sr(R_WQ,4)}, s77 offen" + (f" offset:{1024*j}" if j else "") + " lds")
    a("s_add_u32 m0, s79, 3072", "s_and_b32 s76, s76, 0x3ff")
    for j in range(3): a(f"buffer_load_dwordx4 v{8+j}, {sr(R_WQ,4)}, s77 offen" + (f" offset:{1024*j}" if j else "") + " lds")
    a("s_add_u32 s78, s78, 12288", "s_add_u32 s79, s79, 24576", "s_cmp_eq_u32 s78, s81", "s_cselect_b32 s83, 49152, 0", "s_sub_u32 s78, s78, s83", "s_lshl_b32 s83, s83, 1", "s_sub_u32 s79, s79, s83")
    loop_tail(9, "K_QL")
    a("s_branch K_P2L")
    a("K_SLOAD:")
    def s_ids():
        a("s_sub_u32 s8, s4, 6", "s_lshl_b32 s8, s8, 3", "s_add_u32 s8, s8, s9")
        a("s_lshl_b32 s10, s11, 6", "s_lshl_b32 s77, s15, 4", "s_add_u32 s10, s10, s77")
    s_ids(); rot(o.get("rots", 0))
    a("s_lshl_b32 s77, s8, 2", "s_add_u32 s77, s77, s15", "s_lshl_b32 s77, s77, 10")
    a("v_lshl_add_u32 v2, v16, 16, v18", "v_add_u32 v2, s77, v2")
    a(f"s_mov_b32 s77, {8*65536-1024}", "v_xad_u32 v3, v2, 64, s77", f"v_add_u32 v4, {2*(8*65536-1024)}, v2", f"v_add_u32 v5, {2*(8*65536-1024)}, v3")
    a("s_lshl_b32 s77, s10, 10")
    a("v_lshl_add_u32 v6, v16, 10, v18", "v_add_u32 v6, s77, v6", "s_movk_i32 s77, 7168", "v_xad_u32 v7, v6, 64, s77")
    a("s_lshl_b32 s78, s15, 12", "s_add_u32 s81, s78, 65536")
    a("s_cmp_eq_u32 s10, 0", "s_cselect_b32 s12, 0xffffff00, -1")
    a("v_mov_b32 v22, 0xbf803f80", "v_mov_b32 v23, v22", "v_mov_b32 v24, v22", "v_mov_b32 v25, v22")
    a("v_lshlrev_b32 v26, 14, v16", "v_lshl_add_u32 v26, v17, 4, v26", "v_and_b32 v26, 0xffff, v26", "v_add_u32 v26, s81, v26")
    a("ds_write_b128 v26, v[22:25] offset:2048")
    srd(a, R_HRE, P_HRE, 512*1024); srd(a, R_HIM, P_HIM, 512*1024, delta=2048)
    a("s_add_u32 s78, s78, 16384", "s_mov_b32 s80, 0", "s_waitcnt lgkmcnt(0)")
    stamp(1)
    a("K_SL:")
    a("s_mov_b32 m0, s78", "s_add_u32 s79, s78, 65536")
    for j in range(4): a(f"buffer_load_dwordx4 v{2+j}, {sr(R_X,4)}, s76 offen" + (f" offset:{1024*j}" if j else "") + " lds")
    early0(4, "K_SL0")
    a("s_mov_b32 m0, s79", "s_add_u32 s78, s78, 16384")
    a(f"buffer_load_dwordx4 v6, {sr(R_HRE,4)}, s76 offen lds", f"buffer_load_dwordx4 v7, {sr(R_HRE,4)}, s76 offen offset:1024 lds")
    a("s_mov_b32 exec_lo, s12", f"buffer_load_dwordx4 v6, {sr(R_HIM,4)}, s76 offen offset:2048 lds", "s_mov_b32 exec_lo, -1")
    a(f"buffer_load_dwordx4 v7, {sr(R_HIM,4)}, s76 offen offset:3072 lds")
    a("s_add_u32 s76, s76, 128", "s_and_b32 s76, s76, 0x3ff", "s_and_b32 s78, s78, 0xffff")
    loop_tail(8, "K_SL")

    def p2_ids():
        a("s_and_b32 s6, s5, 7", "s_lshr_b32 s7, s5, 3")
        a("s_lshl_b32 s8, s4, 1", "s_lshr_b32 s9, s7, 1", "s_add_u32 s8, s8, s9")
        a("s_sub_u32 s9, 32, s8", "s_cmp_eq_u32 s8, 0", "s_cselect_b32 s9, 16, s9", "s_bitcmp1_b32 s7, 0", "s_cselect_b32 s8, s9, s8")
    a("K_P2L:")
    srd(a, R_GW, P_GW, 1024); srd(a, R_WO, P_WO, 512*1024)
    a("v_mov_b32 v21, 0", f"buffer_load_dwordx4 v[248:251], v19, {sr(R_GW,4)}, 0 offen")
    p2_ids()
    srd(a, R_DBG, P_DBG, 256); srd(a, R_WS, P_WS, WS_SIZE)
    a("v_and_b32 v5, 2, v16", "v_lshlrev_b32 v5, 1, v5", "v_xor_b32 v5, v5, v17", "v_lshlrev_b32 v5, 4, v5", "v_lshl_add_u32 v5, v16, 10, v5")
    a("s_lshl_b32 s76, s15, 14", "s_lshl_b32 s77, s6, 7", "s_add_u32 s76, s76, s77", "v_add_u32 v5, s76, v5", "v_add_u32 v6, 7168, v5")
    a("s_lshl_b32 s78, s15, 11", "v_mov_b32 v20, 1")
    a("s_waitcnt vmcnt(1)", "s_barrier"); stamp(9)
    a("s_waitcnt vmcnt(0)")
    for c in range(8):
        a(f"s_add_u32 m0, s78, {L_WO + c*8192}", *([f"s_add_u32 s76, s6, {c}", "s_and_b32 s76, s76, 7", "s_lshl_b32 s76, s76, 16"] if o.get("rotk2", 0) else [f"s_mov_b32 s76, {c*65536}"]),
          f"buffer_load_dwordx4 v5, {sr(R_WO,4)}, s76 offen lds", f"buffer_load_dwordx4 v6, {sr(R_WO,4)}, s76 offen offset:1024 lds")
    stamp(13)
    a("s_cmp_lg_u32 s15, 1", "s_cbranch_scc1 K_NOGO", f"buffer_load_dword v20, v21, {sr(R_DBG,4)}, 0 offen{SC1}", "K_NOGO:")
    gate()
    a("s_sub_u32 s9, 32, s8", "s_and_b32 s9, s9, 31", "s_cmp_ge_u32 s6, 4", "s_cselect_b32 s9, s9, s8")
    a("s_cselect_b32 s10, -16, 16", "s_lshl_b32 s11, s6, 10", "s_sub_u32 s12, 8192, s11", "s_cmp_ge_u32 s6, 4", "s_cselect_b32 s11, s12, s11")
    a(f"s_mul_i32 s14, s9, {16*VP}", "s_add_u32 s14, s14, s11", f"s_mul_i32 s76, s15, {4*VP}", "s_add_u32 s14, s14, s76", f"s_add_u32 s14, s14, {WS_V}")
    a("v_mul_i32_i24 v2, s10, v1", "v_add_u32 v2, s14, v2")
    a("s_lshl_b32 s76, s15, 15", "s_and_b32 s77, s8, 1", "s_lshl_b32 s77, s77, 17", "s_add_u32 s76, s76, s77", "s_lshr_b32 s77, s8, 1", "s_lshl_b32 s77, s77, 7", "s_add_u32 s76, s76, s77")
    a("v_lshl_add_u32 v3, v16, 11, v18", "v_add_u32 v3, s76, v3", f"s_movk_i32 s77, {8*2048-1024}", "v_xad_u32 v4, v3, 64, s77")
    FS = o.get("fs", 8)
    a(f"v_lshlrev_b32 v23, {FS}, v1", f"v_lshlrev_b32 v24, {FS+5}, v1", "v_mov_b32 v22, 1", "v_mov_b32 v25, 8", "s_lshl_b32 s79, s15, 12")
    a(f"s_lshl_b32 s82, s4, {FS+5}", f"s_add_u32 s82, s82, {WS_FL}", f"s_lshl_b32 s83, s5, {FS}", f"s_add_u32 s83, s83, {WS_FL}", "s_movk_i32 s84, 20000")
    stamp(10)
    a("s_cmp_ge_u32 s4, 6", "s_cbranch_scc1 K_NOSTG", "s_barrier", "K_NOSTG:")
    a("s_waitcnt vmcnt(0)")
    a("K_GO:", "v_readfirstlane_b32 s90, v20", "s_sub_u32 s84, s84, 1", "s_cselect_b32 s90, 1, s90", "s_cmp_lg_u32 s90, 0", "s_cbranch_scc1 K_GOK",
      f"buffer_load_dword v20, v21, {sr(R_DBG,4)}, 0 offen{SC1}", "s_waitcnt vmcnt(0)", "s_branch K_GO", "K_GOK:")
    stamp(11)
    a("s_barrier")
    a("s_cmp_lg_u32 s15, 1", "s_cbranch_scc1 K_NOSIG", "s_mov_b64 exec, 0xff", f"buffer_atomic_add v22, v24, {sr(R_WS,4)}, s83 offen{SC1}", "s_mov_b64 exec, -1", "K_NOSIG:")
    a("s_cmp_lg_u32 s15, 0", "s_cbranch_scc1 K_POLLED", "s_movk_i32 s84, 20000", "s_mov_b32 exec_hi, 0")
    a("K_POLL:", f"buffer_load_dword v26, v23, {sr(R_WS,4)}, s82 offen{SC1}", "s_sub_u32 s84, s84, 1", "s_cbranch_scc1 K_POLLX", "s_waitcnt vmcnt(0)",
      "v_cmp_eq_u32 vcc, v25, v26", "s_cmp_eq_u64 vcc, exec")
    if o.get("psleep", 0): a("s_cbranch_scc1 K_POLLX", f"s_sleep {o['psleep']}", "s_branch K_POLL")
    else: a("s_cbranch_scc0 K_POLL")
    a("K_POLLX:", "s_mov_b32 exec_hi, -1", "K_POLLED:")
    stamp(12)
    a("s_barrier")
    G = []
    for c in range(8):
        so = [f"s_add_u32 s76, s6, {c}", "s_and_b32 s76, s76, 7", f"s_mul_i32 s76, s76, {OP}"] if o.get("rotk2", 0) else [f"s_mov_b32 s76, {c*OP}"]
        G.append([[f"s_add_u32 m0, s78, {L_O + c*8192}"] + so + [f"buffer_load_dwordx4 v3, {sr(R_WS,4)}, s76 offen{SC1} lds"],
                  [f"buffer_load_dwordx4 v4, {sr(R_WS,4)}, s76 offen offset:1024{SC1} lds"]])
    G.append([([f"s_movk_i32 s76, {j*(VP-1024)}"] if j else [f"s_add_u32 m0, s79, {L_V}", "s_mov_b32 s76, 0"]) + [f"buffer_load_dwordx4 v2, {sr(R_WS,4)}, s76 offen" + (f" offset:{1024*j}" if j else "") + f"{SC1} lds"] for j in range(4)])
    flat = [(gi, ins) for gi, g in enumerate(G) for ins in g]
    last = {gi: i for i, (gi, _) in enumerate(flat)}
    nxt, lag = 0, o.get("lag2", 8)
    for i, (gi, ins) in enumerate(flat):
        a(*ins)
        while nxt < len(G) and i - last[nxt] >= lag:
            a(f"s_waitcnt vmcnt({i - last[nxt]})", "s_barrier"); nxt += 1
    stamp(14)
    for k in range(nxt, len(G)): a(f"s_waitcnt vmcnt({len(flat)-1-last[k]})", "s_barrier")
    stamps_out(15)
    a("s_endpgm")

    a("K_COMP:")
    a("s_or_b32 s76, s2, s3", "s_cmp_lg_u32 s76, 0", "s_cbranch_scc1 K_NOZERO")
    a("s_waitcnt lgkmcnt(0)")
    srd(a, R_WS, P_WS, WS_SIZE)
    a(f"v_lshlrev_b32 v23, {FS}, v1", "v_mov_b32 v24, 0")
    for i in range(4): a(f"s_mov_b32 s82, {WS_FL + (i << (FS+6))}", f"buffer_store_dword v24, v23, {sr(R_WS,4)}, s82 offen{SC1}")
    a("K_NOZERO:")
    a("v_and_b32 v20, 15, v1", "v_lshrrev_b32 v21, 4, v1")
    a("v_lshrrev_b32 v11, 1, v20", "v_xor_b32 v11, v21, v11", "v_lshlrev_b32 v11, 4, v11", "v_lshl_or_b32 v11, v20, 7, v11")
    a("v_xor_b32 v12, 64, v11")
    a("v_mov_b32 v10, 0")
    WF = lambda ks: 220 + 4*ks
    a("s_mov_b32 s86, s9")
    p2_ids()
    a("s_mov_b32 s88, 0x3a000000", "s_mov_b32 s89, 0xba000000", "s_cmp_ge_u32 s6, 4", "s_cselect_b32 s13, s88, s89")
    a("s_lshr_b32 s78, s3, 1", "s_and_b32 s79, s3, 1")
    a("v_and_b32 v22, 31, v1", "v_lshrrev_b32 v23, 5, v1")
    a("s_lshl_b32 s76, s78, 5", "v_add_u32 v24, s76, v22", "v_lshlrev_b32 v25, 5, v24", "v_add_u32 v25, s8, v25", "v_lshlrev_b32 v2, 2, v25")
    a("v_lshrrev_b32 v26, 2, v20", "v_lshl_add_u32 v26, v23, 3, v26", "v_lshlrev_b32 v26, 7, v26")
    a("v_lshrrev_b32 v27, 3, v20", "v_xor_b32 v27, s79, v27", "v_lshl_add_u32 v26, v27, 6, v26")
    a("v_and_b32 v27, 1, v21", "v_lshl_add_u32 v26, v27, 5, v26", "v_and_b32 v27, 3, v1", "v_lshl_add_u32 v26, v27, 3, v26", f"v_add_u32 v8, {L_WO}, v26")
    a("v_bfe_u32 v26, v22, 1, 3", "v_xor_b32 v26, v26, v23", "v_lshlrev_b32 v26, 4, v26", "v_lshl_or_b32 v3, v24, 7, v26")
    a("s_lshl_b32 s76, s79, 9", f"s_add_u32 s76, s76, {L_V}", "v_lshlrev_b32 v26, 4, v22", "v_lshl_add_u32 v26, v23, 10, v26", "v_add_u32 v4, s76, v26")
    a("s_lshl_b32 s76, s79, 2", "v_and_b32 v26, 7, v24", "v_xor_b32 v26, s76, v26", "v_lshlrev_b32 v26, 4, v26", "v_lshl_or_b32 v26, v24, 7, v26", "v_lshl_or_b32 v5, v23, 3, v26")
    a("s_lshl_b32 s76, s3, 11", "v_add_u32 v6, s76, v19")
    a("v_xor_b32 v26, v16, v17", "v_lshlrev_b32 v26, 4, v26", "v_lshl_add_u32 v26, v16, 15, v26",
      "s_lshl_b32 s76, s3, 19", "s_lshl_b32 s77, s8, 10", "s_add_u32 s76, s76, s77", "s_lshl_b32 s77, s6, 7", "s_add_u32 s76, s76, s77", "v_add_u32 v7, s76, v26")
    a("v_cvt_f32_u32 v26, v25", "v_mul_f32 v26, s13, v26", "v_cvt_f32_u32 v27, v23", "v_mul_f32 v27, 4.0, v27", "v_mul_f32 v27, v27, v26", "v_mul_f32 v28, 0x41000000, v26")
    for ks in range(8):
        if ks: a("v_add_f32 v27, v27, v28")
        a("v_add_f32 v29, v27, v26", "v_fma_f32 v30, v26, 2.0, v27", "v_fma_f32 v31, v26, 2.0, v29")
        T = [27, 29, 30, 31]
        for j in range(4): a(f"v_cos_f32 v{32+j}, v{T[j]}", f"v_sin_f32 v{36+j}, v{T[j]}")
        a(cvt(WF(ks), 32, 33), cvt(WF(ks)+1, 34, 35), cvt(WF(ks)+2, 36, 37), cvt(WF(ks)+3, 38, 39))
    a("s_mov_b32 s9, s86")
    a("s_waitcnt lgkmcnt(0)")
    srd(a, R_WS, P_WS, WS_SIZE); srd(a, R_OUT, P_OUT, 2048*1024)
    a("s_cmp_ge_u32 s4, 6", "s_cbranch_scc1 K_SPEC")
    a("s_or_b32 s76, s2, s3", "s_cmp_lg_u32 s76, 0", "s_cbranch_scc1 K_NOGO1")
    srd(a, R_DBG, P_DBG, 256)
    a("v_mov_b32 v22, 1", "s_waitcnt vmcnt(0)", "s_mov_b64 exec, 1", f"buffer_store_dword v22, v10, {sr(R_DBG,4)}, 0 offen{SC1}", "s_mov_b64 exec, -1", "K_NOGO1:")
    def mainloop(reads, mfmas):
        stamp(1)
        a(".p2align 3", "s_barrier", "s_nop 0")
        stamp(2)
        for g_ in reads(0): a(*g_)
        for s in range(15):
            c, ks = s // 2, s % 2
            a("s_waitcnt lgkmcnt(0)", "s_barrier" if ks == 1 else "s_nop 0")
            a(*interleave(mfmas(s), reads(s+1)))
        a("s_waitcnt lgkmcnt(0)", "s_nop 0")
        stamp(3)

    q_ids()
    a("v_lshrrev_b32 v22, 2, v20", "v_lshl_add_u32 v22, v21, 3, v22", "v_mul_u32_u24 v22, 384, v22")
    a("v_lshrrev_b32 v23, 3, v20", "v_and_b32 v24, 1, v21", "v_lshl_or_b32 v23, v24, 1, v23", "v_xor_b32 v23, s3, v23")
    a("v_lshl_add_u32 v22, v23, 5, v22", "v_and_b32 v23, 3, v20", "v_lshl_add_u32 v22, v23, 3, v22")
    a("v_add_u32 v13, 49152, v22", "v_add_u32 v14, 98304, v22")
    MC, MP, SM, ONES = 160, 164, 168, 172
    a("v_lshlrev_b32 v22, 2, v21", "v_sub_u32 v22, v20, v22", f"v_mov_b32 v24, {NEG:#x}", "v_mov_b32 v25, 0")
    for r in range(4):
        a(f"v_subrev_u32 v23, {r}, v22", "v_cmp_gt_u32 vcc, 8, v23", "v_cmp_gt_i32 s[76:77], -8, v23", f"v_mov_b32 v{ONES+r}, 0x3f803f80",
          f"v_cndmask_b32 v{MC+r}, v24, v25, vcc", f"v_cndmask_b32 v{MP+r}, v24, v25, s[76:77]")
    a("v_mov_b32 v26, 0xffff", "v_mov_b32 v27, 0xffff0000")
    for h in range(2):
        a(f"v_cmp_le_i32 vcc, {2*h}, v22", f"v_cmp_le_i32 s[76:77], {2*h+1}, v22", "s_nop 0", "v_cndmask_b32 v28, v25, v26, vcc", "v_cndmask_b32 v29, v25, v27, s[76:77]",
          f"v_or_b32 v{SM+h}, v28, v29")
    a("v_lshrrev_b32 v22, 1, v21", "s_lshl_b32 s76, s3, 1", "v_add_u32 v22, s76, v22", "v_and_b32 v23, 7, v20", "v_xor_b32 v22, v22, v23",
      "v_lshlrev_b32 v22, 4, v22", "v_lshl_or_b32 v22, v20, 7, v22", "v_and_b32 v23, 1, v21", "v_lshl_or_b32 v176, v23, 3, v22")
    a("s_mul_i32 s76, s3, 3072", "v_add_u32 v177, s76, v19")
    a("v_xor_b32 v22, v17, v16", "v_lshlrev_b32 v22, 4, v22", f"s_mul_i32 s76, s10, {OP}", "s_lshl_b32 s77, s13, 10", "s_add_u32 s77, s77, s12", "s_lshl_b32 s77, s77, 7", "s_add_u32 s76, s76, s77", "v_add_u32 v22, s76, v22")
    a("s_cmp_eq_u32 s12, 0", "s_cselect_b32 s77, 0, 11", "s_sub_u32 s78, 1024, s12", "s_sub_u32 s78, s78, s77", "s_mul_i32 s76, s3, 24", "v_mov_b32 v24, 0x80000000")
    for j in range(3):
        a(f"v_add_u32 v23, s76, v16", *( [f"v_add_u32 v23, {8*j}, v23"] if j else []),
          "v_lshl_add_u32 v26, v23, 7, v22", "v_subrev_u32 v23, s77, v23", "v_cmp_gt_u32 vcc, s78, v23", f"v_cndmask_b32 v{178+j}, v24, v26, vcc")
    a(f"s_mov_b32 s94, {SCL:#x}", f"s_mov_b32 s95, {SCL:#x}")
    XA = lambda s, b: 16 + 24*(s % 2) + 4*b
    WB = lambda s, sg: 64 + 12*(s % 2) + 4*sg
    ACC = lambda b, sg: 88 + 12*b + 4*sg
    def q_reads(s):
        c, ks = s // 2, s % 2; st = slot(c); L = []
        wb = 13 if st < 2 else 14
        for sg in range(3):
            for sub in range(2):
                L.append([f"ds_read_b64_tr_b16 {vr(WB(s,sg)+2*sub,2)}, v{wb} offset:{(st%2)*24576 + (32*ks+4*sub)*384 + sg*128}"])
        X = [[f"ds_read_b128 {vr(XA(s,b),4)}, v{11+ks} offset:{st*12288 + b*2048}"] for b in range(6)]
        return L[:2] + X[:1] + L[2:] + X[1:]
    def q_mfmas(s):
        L = []
        for b in range(6):
            for sg in range(3):
                c_ = "0" if s == 0 else ACC(b, sg)
                if sg < 2: L.append(mfma16(ACC(b,sg), WB(s,sg), XA(s,b), c_))
                else: L.append(mfma16(ACC(b,sg), XA(s,b), WB(s,sg), c_))
        return L
    mainloop(q_reads, q_mfmas)
    QB = lambda b: 16 + 2*b
    KB = lambda b: 28 + 2*b
    VB = lambda b: 64 + 2*b
    MX = lambda b: 208 + 2*b
    PP = lambda b: 184 + 4*b
    SC = lambda b: ACC(b, 0)
    SP = lambda b: ACC(b, 1)
    OO = lambda b: ACC(b, 2)
    t = Asm()
    t(*q_mfmas(15))
    for b in range(6):
        for sg, f in ((1, KB), (0, QB), (2, VB)):
            t(cvt(f(b), ACC(b,sg), ACC(b,sg)+1), cvt(f(b)+1, ACC(b,sg)+2, ACC(b,sg)+3))
    for b in range(6):
        t(f"v_mfma_f32_16x16x16_bf16 {vr(SC(b),4)}, {vr(KB(b),2)}, {vr(QB(b),2)}, {vr(MC,4)}")
        if b: t(f"v_mfma_f32_16x16x16_bf16 {vr(SP(b),4)}, {vr(KB(b-1),2)}, {vr(QB(b),2)}, {vr(MP,4)}")
    for b in range(6):
        if b:
            for r in range(4): t(f"v_max_f32 v{SC(b)+r}, v{SC(b)+r}, v{SP(b)+r}")
        t(f"v_max3_f32 v{MX(b)}, v{SC(b)}, v{SC(b)+1}, v{SC(b)+2}", f"v_max_f32 v{MX(b)}, v{MX(b)}, v{SC(b)+3}")
    for x, y in [(0, 1), (2, 3), (4, 5)]:
        t(f"v_permlane32_swap_b32 v{MX(x)}, v{MX(y)}", f"v_max_f32 v{MX(x)}, v{MX(x)}, v{MX(y)}", f"v_mov_b32 v{MX(y)}, v{MX(x)}",
          f"v_permlane16_swap_b32 v{MX(x)}, v{MX(y)}", f"v_max_f32 v{MX(x)}, v{MX(x)}, v{MX(y)}", f"v_mul_f32 v{MX(x)}, s94, v{MX(x)}",
          f"v_mov_b32 v{MX(y)}, v{MX(x)}", f"v_permlane32_swap_b32 v{MX(x)}, v{MX(y)}")
    for b in range(6):
        if o.get("pk", 3) & 1:
            for r in (0, 2): t(f"v_pk_fma_f32 {vr(SC(b)+r,2)}, {vr(SC(b)+r,2)}, s[94:95], {vr(MX(b),2)} op_sel_hi:[1,1,0] neg_lo:[0,0,1] neg_hi:[0,0,1]")
        else:
            for r in range(4): t(f"v_fma_f32 v{SC(b)+r}, v{SC(b)+r}, s94, -v{MX(b)}")
        for r in range(4): t(f"v_exp_f32 v{SC(b)+r}, v{SC(b)+r}")
        if b == 0:
            t(cvt(PP(0), SC(0), SC(0)+1), cvt(PP(0)+1, SC(0)+2, SC(0)+3), f"v_mov_b32 v{PP(0)+2}, 0", f"v_mov_b32 v{PP(0)+3}, 0")
        else:
            t(cvt(PP(b), SC(b), SC(b)+1), cvt(PP(b)+1, SC(b)+2, SC(b)+3))
            t(f"v_and_b32 v{PP(b)+2}, v{PP(b)}, v{SM}", f"v_and_b32 v{PP(b)+3}, v{PP(b)+1}, v{SM+1}")
            t(f"v_xor_b32 v{PP(b)}, v{PP(b)}, v{PP(b)+2}", f"v_xor_b32 v{PP(b)+1}, v{PP(b)+1}, v{PP(b)+3}")
        t(mfma16(SP(b), ONES, PP(b), "0"), mfma16(OO(b), VB(max(b-1, 0)), PP(b), "0"))
        t(f"v_rcp_f32 v{MX(b)}, v{SP(b)}")
        if o.get("pk", 3) & 2:
            for r in (0, 2): t(f"v_pk_mul_f32 {vr(OO(b)+r,2)}, {vr(OO(b)+r,2)}, {vr(MX(b),2)} op_sel_hi:[1,0]")
        else:
            for r in range(4): t(f"v_mul_f32 v{OO(b)+r}, v{OO(b)+r}, v{MX(b)}")
        t(cvt(QB(b), OO(b), OO(b)+1), cvt(QB(b)+1, OO(b)+2, OO(b)+3))
        t(f"ds_write_b64 v176, {vr(QB(b),2)} offset:{L_STG + b*2048}")
    kernel.att = list(t.L)
    a(*schedule(t.L))
    if o.get("verbose"): print("attention est cycles", schedule.last_cycles)
    stamp(12)
    a("s_waitcnt lgkmcnt(0)", "s_barrier")
    stamp(13)
    for j in range(3): a(f"ds_read_b128 {vr(28+4*j,4)}, v177 offset:{L_STG + j*1024}")
    for j in range(3):
        a(f"s_waitcnt lgkmcnt({2-j})", f"buffer_store_dwordx4 {vr(28+4*j,4)}, v{178+j}, {sr(R_WS,4)}, 0 offen{SC1}")
    a("s_branch K_P2C")

    a("K_SPEC:")
    s_ids()
    a("s_lshl_b32 s77, s3, 12", "s_add_u32 s77, s77, 65536")
    a("v_add_u32 v13, s77, v11", "v_add_u32 v14, s77, v12")
    COS, SIN, NCOS = 160, 168, 176
    a("v_cvt_f32_u32 v22, v20", "v_cvt_f32_u32 v23, v21", "v_mul_f32 v23, 4.0, v23")
    for tt in range(2):
        if tt: a("v_add_f32 v22, 0x41800000, v22")
        a("v_mul_f32 v24, 0x3d000000, v22", "v_mul_f32 v26, v24, v23")
        a("v_add_f32 v27, v24, v26", "v_fma_f32 v28, v24, 2.0, v26", "v_fma_f32 v29, v24, 2.0, v27", "v_mul_f32 v25, 0.5, v22")
        for j in range(4): a(f"v_add_f32 v{30+j}, v25, v{26+j}")
        for j in range(8): a(f"v_sin_f32 v{34+j}, v{26+j}", f"v_cos_f32 v{26+j}, v{26+j}")
        for i in range(4):
            a(cvt(COS+4*tt+i, 26+2*i, 27+2*i), cvt(SIN+4*tt+i, 34+2*i, 35+2*i), f"v_xor_b32 v{NCOS+4*tt+i}, 0x80008000, v{COS+4*tt+i}")
    a(f"s_mul_i32 s76, s8, {VP}", "s_lshl_b32 s77, s10, 4", "s_add_u32 s76, s76, s77", f"s_add_u32 s76, s76, {WS_V}")
    a(f"v_mul_u32_u24 v252, {4*16*VP}, v21", "v_lshl_add_u32 v252, v20, 4, v252", "v_add_u32 v252, s76, v252")
    a(f"v_mul_u32_u24 v253, {16*VP}, v1", "s_add_u32 s76, s76, 4096", "v_add_u32 v253, s76, v253")
    XA = lambda s, mt: 16 + 32*(s % 2) + 4*mt
    DB = lambda s, p: 80 + 8*(s % 2) + 4*p
    ACC = lambda mt, p: 96 + 8*mt + 4*p
    def s_reads(s):
        c, ks = s // 2, s % 2; st = slot(c)
        D = [[f"ds_read_b128 {vr(DB(s,p),4)}, v{13+ks} offset:{st*16384 + p*2048}"] for p in range(2)]
        X = [[f"ds_read_b128 {vr(XA(s,mt),4)}, v{11+ks} offset:{st*16384 + mt*2048}"] for mt in range(8)]
        return D[:1] + X[:1] + D[1:] + X[1:]
    def s_mfmas(s):
        return [mfma16(ACC(mt,p), XA(s,mt), DB(s,p), "0" if s == 0 else ACC(mt,p)) for mt in range(8) for p in range(2)]
    mainloop(s_reads, s_mfmas)
    BA = lambda q: 16 + 8*q
    BB = lambda q: 20 + 8*q
    t = Asm(); t(*s_mfmas(15))
    for q in range(4):
        for p, f in ((0, BA), (1, BB)):
            for hf in range(2):
                t(cvt(f(q)+2*hf, ACC(2*q+hf,p), ACC(2*q+hf,p)+1), cvt(f(q)+2*hf+1, ACC(2*q+hf,p)+2, ACC(2*q+hf,p)+3))
    a(*schedule(t.L))
    a("s_cmp_lg_u32 s10, 0", "s_cbranch_scc1 K_NONYQ")
    NA, ND = 48, 52
    for i in range(4): a(f"v_mov_b32 v{NA+i}, v{BB(0)+i}")
    for q in range(1, 4):
        for i in range(4): a(f"v_mov_b32_dpp v{NA+i}, v{BB(q)+i} row_shr:{q} row_mask:0xf bank_mask:0xf")
    for tt in range(2):
        a(mfma16(ND+8*tt, NA, COS+4*tt, "0"), mfma16(ND+8*tt+4, NA, SIN+4*tt, "0"))
    a("s_mov_b32 exec_lo, 0x00010001", "s_mov_b32 exec_hi, 0x00010001")
    for q in range(4):
        for i in range(4): a(f"v_mov_b32 v{BB(q)+i}, 0")
    a("s_mov_b32 exec_lo, 0xffff", "s_mov_b32 exec_hi, 0")
    for tt in range(2):
        for i in range(4): a(cvt(184+4*tt+i, ND+8*tt+2*i, ND+8*tt+2*i+1))
        a(f"s_mov_b32 s76, {tt*16*16*VP}", f"buffer_store_dwordx4 {vr(184+4*tt,4)}, v253, {sr(R_WS,4)}, s76 offen{SC1}")
    a("s_mov_b64 exec, -1", "s_nop 1")
    a("K_NONYQ:", "s_nop 1")
    t = Asm()
    for tt in range(2):
        for q in range(4):
            t(mfma16(ACC(2*q+tt,0), COS+4*tt, BA(q), "0"), mfma16(ACC(2*q+tt,1), SIN+4*tt, BA(q), "0"))
            t(mfma16(ACC(2*q+tt,0), SIN+4*tt, BB(q), ACC(2*q+tt,0)), mfma16(ACC(2*q+tt,1), NCOS+4*tt, BB(q), ACC(2*q+tt,1)))
        for r in range(4):
            d = 48 + 4*(4*tt+r)
            t(cvt(d, ACC(tt,0)+r, ACC(2+tt,0)+r), cvt(d+1, ACC(4+tt,0)+r, ACC(6+tt,0)+r),
              cvt(d+2, ACC(tt,1)+r, ACC(2+tt,1)+r), cvt(d+3, ACC(4+tt,1)+r, ACC(6+tt,1)+r))
            t(f"s_mov_b32 s{76+r%2}, {(16*tt+r)*16*VP}", f"buffer_store_dwordx4 {vr(d,4)}, v252, {sr(R_WS,4)}, s{76+r%2} offen{SC1}")
    a(*schedule(t.L))

    a("K_P2C:")
    stamp(4)
    VF = lambda ks: 48 + 4*ks
    AA, AB = 16, 32
    WO = lambda kk: 80 + 4*kk
    OF = lambda c, ks: 48 + 16*(c % 2) + 4*ks
    OB = lambda ks: 3 if ks == 0 else 208 + ks
    for ks in range(1, 4): a(f"v_xor_b32 v{OB(ks)}, {32*ks}, v3")
    a("s_waitcnt vmcnt(0)")
    stamp(5)
    a("s_barrier")
    for c in range(8):
        for ks in range(4):
            for sub in range(2): a(f"ds_read_b64_tr_b16 {vr(WO(4*c+ks)+2*sub,2)}, v8 offset:{c*8192 + (16*ks+4*sub)*128}")
    a(f"s_mov_b32 s76, {WS_G}", "s_waitcnt lgkmcnt(0)")
    stamp(6)
    a("s_barrier")
    stamp(7)
    a(f"buffer_load_dword v212, v2, {sr(R_WS,4)}, s76 offen{SC1}")
    ordr = lambda c: [f"ds_read_b128 {vr(OF(c,ks),4)}, v{OB(ks)} offset:{L_O + c*8192}" for ks in range(4)]
    omf = lambda c: [mfma32(AB, WO(4*c+ks), OF(c,ks), "0" if (c == 0 and ks == 0) else AB) for ks in range(4)]
    a("s_barrier"); stamp(8)
    a(*ordr(0))
    for c in range(1, 8):
        a("s_barrier")
        a(*ordr(c), "s_waitcnt lgkmcnt(4)")
        a(*omf(c-1))
    vrd = [f"ds_read_b128 {vr(VF(ks),4)}, v4 offset:{ks*2048}" for ks in range(8)]
    a("s_waitcnt lgkmcnt(0)", *omf(7)[:2])
    a("s_barrier"); stamp(9)
    a(*vrd[:4], *omf(7)[2:], *vrd[4:], "s_waitcnt vmcnt(0)", "v_sub_f32 v214, 1.0, v212", f"v_add_u32 v216, {8*32768}, v7")
    for ks in range(8):
        a(f"s_waitcnt lgkmcnt({7-ks})", mfma32(AA, VF(ks), WF(ks), "0" if ks == 0 else AA))
        if ks >= 4: a(*[f"v_mul_f32 v{AB+i}, v{AB+i}, v214" for i in range(4*ks-16, 4*ks-12)])
    for i in range(0, 8, 2):
        for k in (i, i+1): a(f"v_pk_fma_f32 {vr(AA+2*k,2)}, {vr(AA+2*k,2)}, v[212:213], {vr(AB+2*k,2)} op_sel_hi:[1,0,1]")
        if i: a(f"v_xor_b32 v217, {8*i}, v5")
        a(cvt(80+i, AA+2*i, AA+2*i+1), cvt(81+i, AA+2*i+2, AA+2*i+3))
        a(f"ds_write_b64 v{217 if i else 5}, {vr(80+i,2)}")
    a("s_waitcnt lgkmcnt(0)", "s_barrier")
    for j in range(2): a(f"ds_read_b128 {vr(88+4*j,4)}, v6 offset:{j*1024}")
    osc = " sc1" if o.get("outsc1") else (" nt" if o.get("outnt") else "")
    for j in range(2): a(f"s_waitcnt lgkmcnt({1-j})", f"buffer_store_dwordx4 {vr(88+4*j,4)}, v{216 if j else 7}, {sr(R_OUT,4)}, 0 offen{osc}")
    stamp(10)
    stamps_out(11)
    a("K_END:", "s_endpgm")
    return a.L

def k3probe(o):
    a = Asm(); p = o["probe"]
    a("s_cmp_lg_u32 s2, 0", "s_cbranch_scc1 K3_END")
    a("s_load_dwordx2 s[38:39], s[0:1], 88", "s_waitcnt lgkmcnt(0)")
    srd(a, R_WS, P_WS, WS_SIZE)
    a("v_and_b32 v1, 63, v0", "v_lshlrev_b32 v2, 2, v1", "v_bfe_u32 v3, v1, 0, 2", "v_add_u32 v2, v2, v3", "v_lshlrev_b32 v1, 10, v2", "v_mov_b32 v2, 0")
    a(f"s_mov_b32 s4, {WS_ST + 128*o.get('pwave', 0)}")
    if p == 1:
        a(f"buffer_load_dword v3, v2, {sr(R_WS,4)}, s4 offen offset:120", f"buffer_load_dword v4, v1, {sr(R_WS,4)}, s4 offen offset:124")
    else:
        a(f"buffer_load_dword v3, v1, {sr(R_WS,4)}, s4 offen offset:{4*o.get('pb', 0)}", f"buffer_load_dword v4, v1, {sr(R_WS,4)}, s4 offen offset:{4*o.get('pa', 0)}")
    a("s_waitcnt vmcnt(0)", "v_sub_u32 v4, v4, v3")
    op = "v_max_i32_dpp"
    for sh in (1, 2, 4, 8): a(f"{op} v4, v4, v4 row_shr:{sh} row_mask:0xf bank_mask:0xf")
    a(f"{op} v4, v4, v4 row_bcast:15 row_mask:0xa bank_mask:0xf", f"{op} v4, v4, v4 row_bcast:31 row_mask:0xc bank_mask:0xf")
    a("s_nop 1", "v_readlane_b32 s6, v4, 63", "s_nop 3", "s_max_i32 s6, s6, 0", "s_min_i32 s6, s6, 30000", f"s_mul_i32 s6, s6, {10 if p == 1 else (1 if p == 2 else 0)}")
    a("s_memrealtime s[8:9]", "s_waitcnt lgkmcnt(0)", "K3_LOOP:", "s_memrealtime s[10:11]", "s_waitcnt lgkmcnt(0)", "s_sub_u32 s10, s10, s8", "s_cmp_lt_u32 s10, s6", "s_cbranch_scc1 K3_LOOP")
    a("K3_END:", "s_endpgm")
    return a.L

def kd(name, vg):
    return f""".amdhsa_kernel {name}
  .amdhsa_next_free_vgpr {vg}
  .amdhsa_next_free_sgpr 102
  .amdhsa_accum_offset {vg}
  .amdhsa_group_segment_fixed_size 0
  .amdhsa_kernarg_size 96
  .amdhsa_user_sgpr_count 2
  .amdhsa_user_sgpr_kernarg_segment_ptr 1
  .amdhsa_system_sgpr_workgroup_id_x 1
.end_amdhsa_kernel
"""

def build(o):
    hdr = [l for l in open(f"cdna_kernels/{NAME}.s.ref").read().split("\n") if l.startswith(";") and "@launch" not in l and "Override" not in l and "grid=ceil" not in l]
    ks = [(KN, kernel(o))]
    if o.get("probe"):
        out = hdr + [f"; @launch kernel={KN} grid=(256,1,1) block=(512,1,1) lds={LDS}", "; @launch kernel=k3_kernel grid=(256,1,1) block=(256,1,1) lds=0"]
        ks.append(("k3_kernel", k3probe(o)))
    elif o.get("aslist"): out = hdr + [f"; @launch kernel={KN} grid=(256,1,1) block=(512,1,1) lds={LDS}"]
    else: out = hdr + [f"; @launch grid=(256,1,1) block=(512,1,1) lds={LDS}"]
    out += ['.amdgcn_target "amdgcn-amd-amdhsa--gfx950"', ".text"]
    for n, L in ks:
        out += [f".globl {n}", ".p2align 8", f".type {n},@function", f"{n}:"]
        out += ["    " + x if not x.endswith(":") else x for x in fix_hazards(L, verbose=o.get("verbose"))]
        if n == KN: out.append("CODE_END:")
    out += ['.section .rodata,"a"']
    for n, L in ks: out += [".p2align 6", kd(n, 256)]
    return "\n".join(out) + "\n"

if __name__ == "__main__":
    o = {}
    path = f"cdna_kernels/{NAME}.s"
    for x in sys.argv[1:]:
        if "=" in x:
            k, v = x.split("="); o[k] = int(v)
        else: path = x
    o["verbose"] = 1
    open(path, "w").write(build(o))
    print("wrote", path)
```

```python
import sys
sys.path.insert(0, "work")
from asmlib import *

NAME = "gated_mix__spectral_fnet__sliding_local_dilated__prompt"
KN = NAME + "_kernel"
WS_O, WS_V, WS_G, WS_FL, WS_ST = 0, 0x210000, 0x440000, 0x450000, 0x460000
OP = 262144 + 128
VP = 4224
WS_SIZE = 0x4C0000
NEG = 0xF149F2CA
SCL = 0x3EB8AA3B
LDS = 163840
L_O, L_WO, L_V, L_STG, L_CNT = 0, 81920, 147456, 12288, 147456

P_X, P_SRE, P_SIM, P_HRE, P_HIM, P_BX, P_WQ, P_WO, P_GW, P_OUT, P_DBG, P_WS = range(16, 40, 2)
R_X, R_WQ, R_HRE, R_HIM, R_GW, R_WS, R_CODE, R_WO, R_OUT = range(40, 76, 4)
R_DBG = R_CODE

def srd(a, r, p, size, delta=0):
    if delta: a(f"s_sub_u32 s{r}, s{p}, {delta}", f"s_subb_u32 s{r+1}, s{p+1}, 0")
    else: a(f"s_mov_b64 {sr(r,2)}, {sr(p,2)}")
    a(f"s_mov_b32 s{r+2}, {size+delta}", f"s_mov_b32 s{r+3}, 0x20000")

def mfma16(d, x, y, c): return f"v_mfma_f32_16x16x32_bf16 {vr(d,4)}, {vr(x,4)}, {vr(y,4)}, {c if isinstance(c,str) else vr(c,4)}"
def mfma32(d, x, y, c): return f"v_mfma_f32_32x32x16_bf16 {vr(d,16)}, {vr(x,4)}, {vr(y,4)}, {c if isinstance(c,str) else vr(c,16)}"
def cvt(d, x, y): return f"v_cvt_pk_bf16_f32 v{d}, v{x}, v{y}"

def kernel(o):
    a = Asm()
    SC1 = " sc1"
    def stamp(k, rt=None):
        if not o.get("stamp"): return
        a("s_memtime s[96:97]")
        if rt is not None: a("s_memrealtime s[98:99]")
        a("s_waitcnt lgkmcnt(0)", f"v_writelane_b32 v255, s96, {k}")
        if rt is not None: a(f"v_writelane_b32 v255, s98, {rt}")
    def stamps_out(k):
        if not o.get("stamp"): return
        a("s_waitcnt vmcnt(0)"); stamp(k, 31)
        a("s_lshl_b32 s96, s2, 3", "s_add_u32 s96, s96, s3", "s_lshl_b32 s96, s96, 7", f"s_add_u32 s96, s96, {WS_ST}",
          "v_lshlrev_b32 v254, 2, v1", "s_mov_b32 exec_hi, 0", f"buffer_store_dword v255, v254, {sr(R_WS,4)}, s96 offen")
    slot = lambda c: (c + 1) % 4
    MIX = o.get("mixed", 1)
    ISS = "s_cmp_lt_u32 s5, 8" if MIX else "s_cmp_ge_u32 s4, 6"

    stamp(0, 30)
    a("s_load_dwordx16 s[16:31], s[0:1], 0", "s_load_dwordx8 s[32:39], s[0:1], 64")
    a(f"s_getpc_b64 {sr(R_CODE,2)}", "K_PC:")
    a("v_lshrrev_b32 v15, 6, v0", "v_and_b32 v1, 63, v0")
    a("s_cmp_ge_u32 s2, 256", "s_cbranch_scc1 K_END")
    a("v_readfirstlane_b32 s3, v15")
    a("s_and_b32 s4, s2, 7", "s_lshr_b32 s5, s2, 3", "v_lshrrev_b32 v16, 3, v1", "v_and_b32 v17, 7, v1", "v_lshlrev_b32 v19, 4, v1")
    a("s_lshr_b32 s9, s5, 2", "s_and_b32 s11, s5, 3", "s_and_b32 s15, s3, 3")
    def q_ids():
        a("s_lshr_b32 s8, s4, 1", *(["s_mul_i32 s8, s8, 6", "s_sub_u32 s8, s8, 2"] if MIX else ["s_lshl_b32 s8, s8, 3"]), "s_add_u32 s8, s8, s9", "s_and_b32 s10, s4, 1", "s_lshl_b32 s10, s10, 2", "s_add_u32 s10, s10, s11")
        a("s_lshr_b32 s12, s8, 1", "s_mul_i32 s12, s12, 85", "s_and_b32 s13, s8, 1", "s_lshl_b32 s14, s12, 1", "s_add_u32 s14, s14, s13", "s_lshl_b32 s14, s14, 10")
    a("s_cmp_lt_u32 s3, 4", "s_cbranch_scc1 K_COMP")
    if o.get("lprio", 3): a(f"s_setprio {o.get('lprio', 3)}")
    a("s_lshl_b32 s6, s5, 2", "s_add_u32 s6, s6, s15")
    if o.get("codepf", 1):
        a(f"s_mov_b32 s{R_CODE+2}, CODE_END-K_PC", f"s_mov_b32 s{R_CODE+3}, 0x20000", "v_lshrrev_b32 v2, 5, v1", "s_lshl_b32 s7, s6, 8", "v_lshlrev_b32 v2, 7, v2")
        a(f"buffer_load_dword v252, v2, {sr(R_CODE,4)}, s7 offen")
    if MIX:
        a("s_lshr_b32 s13, s4, 1", "s_mul_i32 s13, s13, 96", "s_add_u32 s13, s13, s6", "s_sub_u32 s13, s13, 32", "s_lshl_b32 s13, s13, 3", "s_and_b32 s14, s4, 1", "s_add_u32 s13, s13, s14", "s_lshl_b32 s13, s13, 9")
        a("s_and_b32 s14, s4, 3", "s_lshl_b32 s14, s14, 5", "s_add_u32 s14, s14, s6", "s_lshl_b32 s14, s14, 11")
        a(ISS, "s_cselect_b32 s93, s14, s13", "s_cselect_b32 s13, 9, 10")
        a("s_lshl_b32 s12, s2, 2", "s_add_u32 s12, s12, s15", "s_lshl_b32 s92, s12, 1", "s_lshl_b32 s7, s12, 11")
    else:
        a("s_lshl_b32 s8, s4, 5", "s_add_u32 s8, s8, s5", "s_mul_i32 s12, s8, 171", "s_lshr_b32 s12, s12, 10", "s_mul_i32 s10, s12, 6", "s_sub_u32 s10, s8, s10",
          "s_cmp_ge_u32 s10, 3", "s_addc_u32 s10, s10, 1", "s_lshl_b32 s12, s12, 3", "s_add_u32 s12, s12, s10")
        a("s_lshl_b32 s10, s5, 1", "s_add_u32 s10, s10, s4", "s_sub_u32 s10, s10, 6", "s_lshl_b32 s10, s10, 2")
        a("s_lshr_b32 s13, s4, 1", "s_lshl_b32 s13, s13, 7", "s_add_u32 s13, s13, s6", "s_lshl_b32 s13, s13, 3", "s_and_b32 s14, s4, 1", "s_add_u32 s13, s13, s14", "s_lshl_b32 s13, s13, 9",
          "s_lshl_b32 s14, s6, 11")
        a("s_cmp_ge_u32 s4, 6", "s_cselect_b32 s12, s10, s12", "s_cselect_b32 s93, s14, s13", "s_cselect_b32 s13, 9, 10")
        a("s_lshl_b32 s12, s12, 2", "s_add_u32 s12, s12, s15", "s_lshl_b32 s92, s12, 1", "s_lshl_b32 s7, s12, 11")
    a("v_lshrrev_b32 v3, 4, v1", "v_lshlrev_b32 v3, s13, v3", "v_bfe_u32 v4, v1, 2, 2", "v_lshl_add_u32 v20, v4, 7, v3")
    wcalc = []
    for j in range(3):
        wcalc += [f"v_add_u32 v22, {8*j}, v16", "v_mul_u32_u24 v23, 43, v22", "v_lshrrev_b32 v24, 7, v23", "v_and_b32 v24, 2, v24",
          "v_lshrrev_b32 v23, 8, v23", "v_and_or_b32 v23, v23, 4, v24", "v_xor_b32 v23, v23, v17",
          "v_lshlrev_b32 v23, 4, v23", f"v_subrev_u32 v22, {j}, v22", "v_lshl_add_u32 v23, v22, 10, v23", f"v_add_u32 v{5+j}, s76, v23"]
    wcalc += ["s_movk_i32 s77, 24576"] + [f"v_xad_u32 v{8+j}, v{5+j}, 64, s77" for j in range(3)]
    a("v_lshrrev_b32 v13, 4, v1", "v_lshlrev_b32 v13, 7, v13", "s_lshl_b32 s95, s2, 2", "s_add_u32 s95, s95, s15", "s_lshl_b32 s95, s95, 9")
    a("v_lshlrev_b32 v14, 3, v13", "s_lshl_b32 s85, s6, 12", "s_add_u32 s85, s85, 384")
    if o.get("xslow", 0) and MIX:
        a("v_lshrrev_b32 v12, 3, v1", "v_min_u32 v12, 4, v12", "v_lshlrev_b32 v12, 10, v12", "s_lshr_b32 s86, s4, 1", "s_mul_i32 s86, s86, 102", "s_add_u32 s86, s86, s6", "s_mul_i32 s86, s86, 5120", "s_add_u32 s86, s86, 384")
    if o.get("slowt", 1):
        if MIX: a("v_lshrrev_b32 v21, 2, v1", "v_lshlrev_b32 v21, 10, v21", "s_lshl_b32 s94, s6, 14", f"s_sub_u32 s94, s94, {32*16384-384}", "s_bitcmp0_b32 s4, 0", "s_cselect_b32 s94, s94, 0x7ff00000")
        else: a("v_lshrrev_b32 v21, 2, v1", "v_min_u32 v21, 11, v21", "v_lshlrev_b32 v21, 10, v21", "s_mul_i32 s94, s6, 12288", "s_add_u32 s94, s94, 384",
          "s_bitcmp1_b32 0x15, s4", "s_cselect_b32 s94, s94, 0x7ff00000")
    a("s_waitcnt lgkmcnt(0)")
    srd(a, R_X, P_X, 2048*1024)
    tnt = " nt" if o.get("touchnt") else ""
    a(f"buffer_load_dwordx4 v[240:243], v19, {sr(R_X,4)}, s7 offen{tnt}", f"buffer_load_dwordx4 v[244:247], v19, {sr(R_X,4)}, s7 offen offset:1024{tnt}")
    a("s_cmp_lt_u32 s4, 4" if MIX else "s_cmp_eq_u32 s4, 6", f"s_cselect_b64 {sr(R_WQ,2)}, {sr(P_HRE,2)}, {sr(P_HIM,2)}", "s_mov_b32 s77, 0x180000",
      ISS, f"s_cselect_b64 {sr(R_WQ,2)}, {sr(R_WQ,2)}, {sr(P_WQ,2)}", f"s_cselect_b32 s{R_WQ+2}, 0x80000, s77", f"s_mov_b32 s{R_WQ+3}, 0x20000")
    if o.get("touch", 1): a(f"buffer_load_dword v252, v20, {sr(R_WQ,4)}, s93 offen{tnt}")
    if o.get("wot", 1):
        srd(a, R_WO, P_WO, 512*1024)
        a(f"buffer_load_dword v252, v13, {sr(R_WO,4)}, s95 offen")
        if o.get("woslow", 1): a(f"buffer_load_dword v252, v14, {sr(R_WO,4)}, s85 offen")
    if o.get("xslow", 0) and MIX: a(f"buffer_load_dword v252, v12, {sr(R_X,4)}, s86 offen")
    if o.get("diag0"):
        stamp(16)
        for k in (3, 2, 1, 0): a(f"s_waitcnt vmcnt({k})"); stamp(20-k)
        a(ISS)
    a("v_lshrrev_b32 v18, 1, v16", "v_xor_b32 v18, v17, v18", "v_lshlrev_b32 v18, 4, v18")
    a("s_cbranch_scc1 K_SLOAD")
    if o.get("slowt", 1): a(f"buffer_load_dword v252, v21, {sr(R_WQ,4)}, s94 offen")
    q_ids()
    a("s_mul_i32 s76, s15, 49152", "s_add_u32 s77, s76, s14", "s_and_b32 s78, s15, 1", "s_lshl_b32 s78, s78, 6")
    a("v_xor_b32 v2, s78, v18", "v_lshl_add_u32 v2, v16, 11, v2", "v_add_u32 v2, s77, v2")
    a("s_movk_i32 s77, 15360", "v_xad_u32 v3, v2, 64, s77", "v_add_u32 v4, 30720, v2")
    a("s_lshl_b32 s77, s10, 7", "s_add_u32 s76, s76, s77")

    def rot(r):
        if r == 0: a("s_mov_b32 s76, 0")
        elif r == 1: a("s_lshl_b32 s76, s11, 8")
        elif r == 2: a("s_lshl_b32 s76, s11, 1", "s_add_u32 s76, s76, s9", "s_and_b32 s76, s76, 7", "s_lshl_b32 s76, s76, 7")
    def gate():
        R = (252, 253)
        a("v_mov_b32 v252, 0", "v_mov_b32 v253, 0")
        for i in range(4): a(f"v_dot2c_f32_bf16 v252, v{240+i}, v{248+i}", f"v_dot2c_f32_bf16 v253, v{244+i}, v{248+i}")
        a("s_lshl_b32 s90, s92, 2", f"s_add_u32 s90, s90, {WS_G}", "v_cmp_eq_u32 vcc, 63, v1", "v_mov_b32 v244, 0x80000000")
        for sh in (1, 2, 4, 8):
            for r in R: a(f"v_add_f32_dpp v{r}, v{r}, v{r} row_shr:{sh} row_mask:0xf bank_mask:0xf bound_ctrl:1")
        for r in R: a(f"v_add_f32_dpp v{r}, v{r}, v{r} row_bcast:15 row_mask:0xa bank_mask:0xf")
        for r in R: a(f"v_add_f32_dpp v{r}, v{r}, v{r} row_bcast:31 row_mask:0xc bank_mask:0xf")
        a("v_cndmask_b32_e64 v244, v244, 0, vcc")
        for op in ("v_mul_f32 v{0}, 0xbfb8aa3b, v{0}", "v_exp_f32 v{0}, v{0}", "v_add_f32 v{0}, 1.0, v{0}", "v_rcp_f32 v{0}, v{0}"):
            for r in R: a(op.format(r))
        a(f"buffer_store_dwordx2 v[252:253], v244, {sr(R_WS,4)}, s90 offen{SC1}")
    def early0(n, lab):
        if o.get("early0", 0): a("s_cmp_lg_u32 s80, 1", f"s_cbranch_scc1 {lab}", f"s_waitcnt vmcnt({n})", "s_barrier", f"{lab}:")
    def loop_tail(n, lab):
        a("s_add_u32 s80, s80, 1", f"s_cmp_le_u32 s80, {2 if o.get('early0', 0) else 1}", f"s_cbranch_scc1 {lab}")
        a(f"s_waitcnt vmcnt({n})", "s_barrier")
        if o.get("stamp", 0) == 2: a("s_memtime s[96:97]", "s_waitcnt lgkmcnt(0)", "s_mov_b32 m0, s80", "s_nop 0", "v_writelane_b32 v255, s96, m0")
        a("s_cmp_lt_u32 s80, 8", f"s_cbranch_scc1 {lab}")

    a(*wcalc)
    rot(o.get("rotq", 0))
    a("s_mul_i32 s78, s15, 3072", "s_add_u32 s81, s78, 49152", "s_lshl_b32 s79, s78, 1", "s_add_u32 s78, s78, 12288", f"s_add_u32 s79, s79, {49152+24576}", "s_mov_b32 s80, 0")
    stamp(1)
    a("K_QL:")
    a("s_mov_b32 m0, s78", "s_mul_i32 s77, s76, 1536")
    for j in range(3): a(f"buffer_load_dwordx4 v{2+j}, {sr(R_X,4)}, s76 offen" + (f" offset:{1024*j}" if j else "") + " lds")
    early0(3, "K_QL0")
    a("s_mov_b32 m0, s79", "s_add_u32 s76, s76, 128")
    for j in range(3): a(f"buffer_load_dwordx4 v{5+j}, {sr(R_WQ,4)}, s77 offen" + (f" offset:{1024*j}" if j else "") + " lds")
    a("s_add_u32 m0, s79, 3072", "s_and_b32 s76, s76, 0x3ff")
    for j in range(3): a(f"buffer_load_dwordx4 v{8+j}, {sr(R_WQ,4)}, s77 offen" + (f" offset:{1024*j}" if j else "") + " lds")
    a("s_add_u32 s78, s78, 12288", "s_add_u32 s79, s79, 24576", "s_cmp_eq_u32 s78, s81", "s_cselect_b32 s83, 49152, 0", "s_sub_u32 s78, s78, s83", "s_lshl_b32 s83, s83, 1", "s_sub_u32 s79, s79, s83")
    loop_tail(9, "K_QL")
    a("s_branch K_P2L")
    a("K_SLOAD:")
    def s_ids():
        a(*(["s_lshl_b32 s8, s4, 1"] if MIX else ["s_sub_u32 s8, s4, 6", "s_lshl_b32 s8, s8, 3"]), "s_add_u32 s8, s8, s9")
        a("s_lshl_b32 s10, s11, 6", "s_lshl_b32 s77, s15, 4", "s_add_u32 s10, s10, s77")
    s_ids(); rot(o.get("rots", 0))
    a("s_lshl_b32 s77, s8, 2", "s_add_u32 s77, s77, s15", "s_lshl_b32 s77, s77, 10")
    a("v_lshl_add_u32 v2, v16, 16, v18", "v_add_u32 v2, s77, v2")
    a(f"s_mov_b32 s77, {8*65536-1024}", "v_xad_u32 v3, v2, 64, s77", f"v_add_u32 v4, {2*(8*65536-1024)}, v2", f"v_add_u32 v5, {2*(8*65536-1024)}, v3")
    a("s_lshl_b32 s77, s10, 10")
    a("v_lshl_add_u32 v6, v16, 10, v18", "v_add_u32 v6, s77, v6", "s_movk_i32 s77, 7168", "v_xad_u32 v7, v6, 64, s77")
    a("s_lshl_b32 s78, s15, 12", "s_add_u32 s81, s78, 65536")
    a("s_cmp_eq_u32 s10, 0", "s_cselect_b32 s12, 0xffffff00, -1")
    a("v_mov_b32 v22, 0xbf803f80", "v_mov_b32 v23, v22", "v_mov_b32 v24, v22", "v_mov_b32 v25, v22")
    a("v_lshlrev_b32 v26, 14, v16", "v_lshl_add_u32 v26, v17, 4, v26", "v_and_b32 v26, 0xffff, v26", "v_add_u32 v26, s81, v26")
    a("ds_write_b128 v26, v[22:25] offset:2048")
    srd(a, R_HRE, P_HRE, 512*1024); srd(a, R_HIM, P_HIM, 512*1024, delta=2048)
    a("s_add_u32 s78, s78, 16384", "s_mov_b32 s80, 0", "s_waitcnt lgkmcnt(0)")
    stamp(1)
    a("K_SL:")
    a("s_mov_b32 m0, s78", "s_add_u32 s79, s78, 65536")
    for j in range(4): a(f"buffer_load_dwordx4 v{2+j}, {sr(R_X,4)}, s76 offen" + (f" offset:{1024*j}" if j else "") + " lds")
    early0(4, "K_SL0")
    a("s_mov_b32 m0, s79", "s_add_u32 s78, s78, 16384")
    a(f"buffer_load_dwordx4 v6, {sr(R_HRE,4)}, s76 offen lds", f"buffer_load_dwordx4 v7, {sr(R_HRE,4)}, s76 offen offset:1024 lds")
    a("s_mov_b32 exec_lo, s12", f"buffer_load_dwordx4 v6, {sr(R_HIM,4)}, s76 offen offset:2048 lds", "s_mov_b32 exec_lo, -1")
    a(f"buffer_load_dwordx4 v7, {sr(R_HIM,4)}, s76 offen offset:3072 lds")
    a("s_add_u32 s76, s76, 128", "s_and_b32 s76, s76, 0x3ff", "s_and_b32 s78, s78, 0xffff")
    loop_tail(8, "K_SL")

    def p2_ids():
        a("s_and_b32 s6, s5, 7", "s_lshr_b32 s7, s5, 3")
        a("s_lshl_b32 s8, s4, 1", "s_lshr_b32 s9, s7, 1", "s_add_u32 s8, s8, s9")
        a("s_sub_u32 s9, 32, s8", "s_cmp_eq_u32 s8, 0", "s_cselect_b32 s9, 16, s9", "s_bitcmp1_b32 s7, 0", "s_cselect_b32 s8, s9, s8")
    a("K_P2L:")
    srd(a, R_GW, P_GW, 1024); srd(a, R_WO, P_WO, 512*1024)
    a("v_mov_b32 v21, 0", f"buffer_load_dwordx4 v[248:251], v19, {sr(R_GW,4)}, 0 offen")
    p2_ids()
    srd(a, R_DBG, P_DBG, 256); srd(a, R_WS, P_WS, WS_SIZE)
    a("v_and_b32 v5, 2, v16", "v_lshlrev_b32 v5, 1, v5", "v_xor_b32 v5, v5, v17", "v_lshlrev_b32 v5, 4, v5", "v_lshl_add_u32 v5, v16, 10, v5")
    a("s_lshl_b32 s76, s15, 14", "s_lshl_b32 s77, s6, 7", "s_add_u32 s76, s76, s77", "v_add_u32 v5, s76, v5", "v_add_u32 v6, 7168, v5")
    a("s_lshl_b32 s78, s15, 11", "v_mov_b32 v20, 1")
    a("s_waitcnt vmcnt(1)", "s_barrier"); stamp(9)
    a("s_waitcnt vmcnt(0)")
    for c in range(8):
        a(f"s_add_u32 m0, s78, {L_WO + c*8192}", *([f"s_add_u32 s76, s6, {c}", "s_and_b32 s76, s76, 7", "s_lshl_b32 s76, s76, 16"] if o.get("rotk2", 0) else [f"s_mov_b32 s76, {c*65536}"]),
          f"buffer_load_dwordx4 v5, {sr(R_WO,4)}, s76 offen lds", f"buffer_load_dwordx4 v6, {sr(R_WO,4)}, s76 offen offset:1024 lds")
    stamp(13)
    a("s_cmp_lg_u32 s15, 1", "s_cbranch_scc1 K_NOGO", f"buffer_load_dword v20, v21, {sr(R_DBG,4)}, 0 offen{SC1}", "K_NOGO:")
    gate()
    a("s_sub_u32 s9, 32, s8", "s_and_b32 s9, s9, 31", "s_cmp_ge_u32 s6, 4", "s_cselect_b32 s9, s9, s8")
    a("s_cselect_b32 s10, -16, 16", "s_lshl_b32 s11, s6, 10", "s_sub_u32 s12, 8192, s11", "s_cmp_ge_u32 s6, 4", "s_cselect_b32 s11, s12, s11")
    a(f"s_mul_i32 s14, s9, {16*VP}", "s_add_u32 s14, s14, s11", f"s_mul_i32 s76, s15, {4*VP}", "s_add_u32 s14, s14, s76", f"s_add_u32 s14, s14, {WS_V}")
    a("v_mul_i32_i24 v2, s10, v1", "v_add_u32 v2, s14, v2")
    a("s_lshl_b32 s76, s15, 15", "s_and_b32 s77, s8, 1", "s_lshl_b32 s77, s77, 17", "s_add_u32 s76, s76, s77", "s_lshr_b32 s77, s8, 1", "s_lshl_b32 s77, s77, 7", "s_add_u32 s76, s76, s77")
    a("v_lshl_add_u32 v3, v16, 11, v18", "v_add_u32 v3, s76, v3", f"s_movk_i32 s77, {8*2048-1024}", "v_xad_u32 v4, v3, 64, s77")
    FS = o.get("fs", 8)
    a(f"v_lshlrev_b32 v23, {FS}, v1", f"v_lshlrev_b32 v24, {FS+5}, v1", "v_mov_b32 v22, 1", "v_mov_b32 v25, 8", "s_lshl_b32 s79, s15, 12")
    a(f"s_lshl_b32 s82, s4, {FS+5}", f"s_add_u32 s82, s82, {WS_FL}", f"s_lshl_b32 s83, s5, {FS}", f"s_add_u32 s83, s83, {WS_FL}", "s_movk_i32 s84, 20000")
    stamp(10)
    a(ISS, "s_cbranch_scc1 K_NOSTG", "s_barrier", "K_NOSTG:")
    a("s_waitcnt vmcnt(0)")
    a("K_GO:", "v_readfirstlane_b32 s90, v20", "s_sub_u32 s84, s84, 1", "s_cselect_b32 s90, 1, s90", "s_cmp_lg_u32 s90, 0", "s_cbranch_scc1 K_GOK",
      f"buffer_load_dword v20, v21, {sr(R_DBG,4)}, 0 offen{SC1}", "s_waitcnt vmcnt(0)", "s_branch K_GO", "K_GOK:")
    stamp(11)
    a("s_barrier")
    a("s_cmp_lg_u32 s15, 1", "s_cbranch_scc1 K_NOSIG", "s_mov_b64 exec, 0xff", f"buffer_atomic_add v22, v24, {sr(R_WS,4)}, s83 offen{SC1}", "s_mov_b64 exec, -1", "K_NOSIG:")
    a("s_cmp_lg_u32 s15, 0", "s_cbranch_scc1 K_POLLED", "s_movk_i32 s84, 20000", "s_mov_b32 exec_hi, 0")
    a("K_POLL:", f"buffer_load_dword v26, v23, {sr(R_WS,4)}, s82 offen{SC1}", "s_sub_u32 s84, s84, 1", "s_cbranch_scc1 K_POLLX", "s_waitcnt vmcnt(0)",
      "v_cmp_eq_u32 vcc, v25, v26", "s_cmp_eq_u64 vcc, exec")
    if o.get("psleep", 0): a("s_cbranch_scc1 K_POLLX", f"s_sleep {o['psleep']}", "s_branch K_POLL")
    else: a("s_cbranch_scc0 K_POLL")
    a("K_POLLX:", "s_mov_b32 exec_hi, -1", "K_POLLED:")
    stamp(12)
    a("s_barrier")
    G = []
    for c in range(8):
        so = [f"s_add_u32 s76, s6, {c}", "s_and_b32 s76, s76, 7", f"s_mul_i32 s76, s76, {OP}"] if o.get("rotk2", 0) else [f"s_mov_b32 s76, {c*OP}"]
        G.append([[f"s_add_u32 m0, s78, {L_O + c*8192}"] + so + [f"buffer_load_dwordx4 v3, {sr(R_WS,4)}, s76 offen{SC1} lds"],
                  [f"buffer_load_dwordx4 v4, {sr(R_WS,4)}, s76 offen offset:1024{SC1} lds"]])
    G.append([([f"s_movk_i32 s76, {j*(VP-1024)}"] if j else [f"s_add_u32 m0, s79, {L_V}", "s_mov_b32 s76, 0"]) + [f"buffer_load_dwordx4 v2, {sr(R_WS,4)}, s76 offen" + (f" offset:{1024*j}" if j else "") + f"{SC1} lds"] for j in range(4)])
    if o.get("vfirst", 0): G = G[-1:] + G[:-1]
    flat = [(gi, ins) for gi, g in enumerate(G) for ins in g]
    last = {gi: i for i, (gi, _) in enumerate(flat)}
    nxt, lag = 0, o.get("lag2", 8)
    for i, (gi, ins) in enumerate(flat):
        a(*ins)
        while nxt < len(G) and i - last[nxt] >= lag:
            a(f"s_waitcnt vmcnt({i - last[nxt]})", "s_barrier"); nxt += 1
    stamp(14)
    for k in range(nxt, len(G)): a(f"s_waitcnt vmcnt({len(flat)-1-last[k]})", "s_barrier")
    stamps_out(15)
    a("s_endpgm")

    a("K_COMP:")
    a("s_or_b32 s76, s2, s3", "s_cmp_lg_u32 s76, 0", "s_cbranch_scc1 K_NOZERO")
    a("s_waitcnt lgkmcnt(0)")
    srd(a, R_WS, P_WS, WS_SIZE)
    a(f"v_lshlrev_b32 v23, {FS}, v1", "v_mov_b32 v24, 0")
    for i in range(4): a(f"s_mov_b32 s82, {WS_FL + (i << (FS+6))}", f"buffer_store_dword v24, v23, {sr(R_WS,4)}, s82 offen{SC1}")
    a("K_NOZERO:")
    a("v_and_b32 v20, 15, v1", "v_lshrrev_b32 v21, 4, v1")
    a("v_lshrrev_b32 v11, 1, v20", "v_xor_b32 v11, v21, v11", "v_lshlrev_b32 v11, 4, v11", "v_lshl_or_b32 v11, v20, 7, v11")
    a("v_xor_b32 v12, 64, v11")
    a("v_mov_b32 v10, 0")
    WF = lambda ks: 220 + 4*ks
    a("s_mov_b32 s86, s9")
    p2_ids()
    a("s_mov_b32 s88, 0x3a000000", "s_mov_b32 s89, 0xba000000", "s_cmp_ge_u32 s6, 4", "s_cselect_b32 s13, s88, s89")
    a("s_lshr_b32 s78, s3, 1", "s_and_b32 s79, s3, 1")
    a("v_and_b32 v22, 31, v1", "v_lshrrev_b32 v23, 5, v1")
    a("s_lshl_b32 s76, s78, 5", "v_add_u32 v24, s76, v22", "v_lshlrev_b32 v25, 5, v24", "v_add_u32 v25, s8, v25", "v_lshlrev_b32 v2, 2, v25")
    a("v_lshrrev_b32 v26, 2, v20", "v_lshl_add_u32 v26, v23, 3, v26", "v_lshlrev_b32 v26, 7, v26")
    a("v_lshrrev_b32 v27, 3, v20", "v_xor_b32 v27, s79, v27", "v_lshl_add_u32 v26, v27, 6, v26")
    a("v_and_b32 v27, 1, v21", "v_lshl_add_u32 v26, v27, 5, v26", "v_and_b32 v27, 3, v1", "v_lshl_add_u32 v26, v27, 3, v26", f"v_add_u32 v8, {L_WO}, v26")
    a("v_bfe_u32 v26, v22, 1, 3", "v_xor_b32 v26, v26, v23", "v_lshlrev_b32 v26, 4, v26", "v_lshl_or_b32 v3, v24, 7, v26")
    a("s_lshl_b32 s76, s79, 9", f"s_add_u32 s76, s76, {L_V}", "v_lshlrev_b32 v26, 4, v22", "v_lshl_add_u32 v26, v23, 10, v26", "v_add_u32 v4, s76, v26")
    a("s_lshl_b32 s76, s79, 2", "v_and_b32 v26, 7, v24", "v_xor_b32 v26, s76, v26", "v_lshlrev_b32 v26, 4, v26", "v_lshl_or_b32 v26, v24, 7, v26", "v_lshl_or_b32 v5, v23, 3, v26")
    a("s_lshl_b32 s76, s3, 11", "v_add_u32 v6, s76, v19")
    a("v_xor_b32 v26, v16, v17", "v_lshlrev_b32 v26, 4, v26", "v_lshl_add_u32 v26, v16, 15, v26",
      "s_lshl_b32 s76, s3, 19", "s_lshl_b32 s77, s8, 10", "s_add_u32 s76, s76, s77", "s_lshl_b32 s77, s6, 7", "s_add_u32 s76, s76, s77", "v_add_u32 v7, s76, v26")
    a("v_cvt_f32_u32 v26, v25", "v_mul_f32 v26, s13, v26", "v_cvt_f32_u32 v27, v23", "v_mul_f32 v27, 4.0, v27", "v_mul_f32 v27, v27, v26", "v_mul_f32 v28, 0x41000000, v26")
    for ks in range(8):
        if ks: a("v_add_f32 v27, v27, v28")
        a("v_add_f32 v29, v27, v26", "v_fma_f32 v30, v26, 2.0, v27", "v_fma_f32 v31, v26, 2.0, v29")
        T = [27, 29, 30, 31]
        for j in range(4): a(f"v_cos_f32 v{32+j}, v{T[j]}", f"v_sin_f32 v{36+j}, v{T[j]}")
        a(cvt(WF(ks), 32, 33), cvt(WF(ks)+1, 34, 35), cvt(WF(ks)+2, 36, 37), cvt(WF(ks)+3, 38, 39))
    a("s_mov_b32 s9, s86")
    a("s_waitcnt lgkmcnt(0)")
    srd(a, R_WS, P_WS, WS_SIZE); srd(a, R_OUT, P_OUT, 2048*1024)
    a("s_or_b32 s76, s2, s3", "s_cmp_lg_u32 s76, 0", "s_cbranch_scc1 K_NOGO1")
    srd(a, R_DBG, P_DBG, 256)
    a("v_mov_b32 v22, 1", "s_waitcnt vmcnt(0)", "s_mov_b64 exec, 1", f"buffer_store_dword v22, v10, {sr(R_DBG,4)}, 0 offen{SC1}", "s_mov_b64 exec, -1", "K_NOGO1:")
    a(ISS, "s_cbranch_scc1 K_SPEC")
    def mainloop(reads, mfmas):
        stamp(1)
        a(".p2align 3", "s_barrier", "s_nop 0")
        stamp(2)
        for g_ in reads(0): a(*g_)
        for s in range(15):
            c, ks = s // 2, s % 2
            a("s_waitcnt lgkmcnt(0)", "s_barrier" if ks == 1 else "s_nop 0")
            a(*interleave(mfmas(s), reads(s+1)))
        a("s_waitcnt lgkmcnt(0)", "s_nop 0")
        stamp(3)

    q_ids()
    a("v_lshrrev_b32 v22, 2, v20", "v_lshl_add_u32 v22, v21, 3, v22", "v_mul_u32_u24 v22, 384, v22")
    a("v_lshrrev_b32 v23, 3, v20", "v_and_b32 v24, 1, v21", "v_lshl_or_b32 v23, v24, 1, v23", "v_xor_b32 v23, s3, v23")
    a("v_lshl_add_u32 v22, v23, 5, v22", "v_and_b32 v23, 3, v20", "v_lshl_add_u32 v22, v23, 3, v22")
    a("v_add_u32 v13, 49152, v22", "v_add_u32 v14, 98304, v22")
    MC, MP, SM, ONES = 160, 164, 168, 172
    a("v_lshlrev_b32 v22, 2, v21", "v_sub_u32 v22, v20, v22", f"v_mov_b32 v24, {NEG:#x}", "v_mov_b32 v25, 0")
    for r in range(4):
        a(f"v_subrev_u32 v23, {r}, v22", "v_cmp_gt_u32 vcc, 8, v23", "v_cmp_gt_i32 s[76:77], -8, v23", f"v_mov_b32 v{ONES+r}, 0x3f803f80",
          f"v_cndmask_b32 v{MC+r}, v24, v25, vcc", f"v_cndmask_b32 v{MP+r}, v24, v25, s[76:77]")
    a("v_mov_b32 v26, 0xffff", "v_mov_b32 v27, 0xffff0000")
    for h in range(2):
        a(f"v_cmp_le_i32 vcc, {2*h}, v22", f"v_cmp_le_i32 s[76:77], {2*h+1}, v22", "s_nop 0", "v_cndmask_b32 v28, v25, v26, vcc", "v_cndmask_b32 v29, v25, v27, s[76:77]",
          f"v_or_b32 v{SM+h}, v28, v29")
    a("v_lshrrev_b32 v22, 1, v21", "s_lshl_b32 s76, s3, 1", "v_add_u32 v22, s76, v22", "v_and_b32 v23, 7, v20", "v_xor_b32 v22, v22, v23",
      "v_lshlrev_b32 v22, 4, v22", "v_lshl_or_b32 v22, v20, 7, v22", "v_and_b32 v23, 1, v21", "v_lshl_or_b32 v176, v23, 3, v22")
    a("s_mul_i32 s76, s3, 3072", "v_add_u32 v177, s76, v19")
    a("v_xor_b32 v22, v17, v16", "v_lshlrev_b32 v22, 4, v22", f"s_mul_i32 s76, s10, {OP}", "s_lshl_b32 s77, s13, 10", "s_add_u32 s77, s77, s12", "s_lshl_b32 s77, s77, 7", "s_add_u32 s76, s76, s77", "v_add_u32 v22, s76, v22")
    a("s_cmp_eq_u32 s12, 0", "s_cselect_b32 s77, 0, 11", "s_sub_u32 s78, 1024, s12", "s_sub_u32 s78, s78, s77", "s_mul_i32 s76, s3, 24", "v_mov_b32 v24, 0x80000000")
    for j in range(3):
        a(f"v_add_u32 v23, s76, v16", *( [f"v_add_u32 v23, {8*j}, v23"] if j else []),
          "v_lshl_add_u32 v26, v23, 7, v22", "v_subrev_u32 v23, s77, v23", "v_cmp_gt_u32 vcc, s78, v23", f"v_cndmask_b32 v{178+j}, v24, v26, vcc")
    a(f"s_mov_b32 s94, {SCL:#x}", f"s_mov_b32 s95, {SCL:#x}")
    XA = lambda s, b: 16 + 24*(s % 2) + 4*b
    WB = lambda s, sg: 64 + 12*(s % 2) + 4*sg
    ACC = lambda b, sg: 88 + 12*b + 4*sg
    def q_reads(s):
        c, ks = s // 2, s % 2; st = slot(c); L = []
        wb = 13 if st < 2 else 14
        for sg in range(3):
            for sub in range(2):
                L.append([f"ds_read_b64_tr_b16 {vr(WB(s,sg)+2*sub,2)}, v{wb} offset:{(st%2)*24576 + (32*ks+4*sub)*384 + sg*128}"])
        X = [[f"ds_read_b128 {vr(XA(s,b),4)}, v{11+ks} offset:{st*12288 + b*2048}"] for b in range(6)]
        return L[:2] + X[:1] + L[2:] + X[1:]
    def q_mfmas(s):
        L = []
        for b in range(6):
            for sg in range(3):
                c_ = "0" if s == 0 else ACC(b, sg)
                if sg < 2: L.append(mfma16(ACC(b,sg), WB(s,sg), XA(s,b), c_))
                else: L.append(mfma16(ACC(b,sg), XA(s,b), WB(s,sg), c_))
        return L
    mainloop(q_reads, q_mfmas)
    QB = lambda b: 16 + 2*b
    KB = lambda b: 28 + 2*b
    VB = lambda b: 64 + 2*b
    MX = lambda b: 208 + 2*b
    PP = lambda b: 184 + 4*b
    SC = lambda b: ACC(b, 0)
    SP = lambda b: ACC(b, 1)
    OO = lambda b: ACC(b, 2)
    t = Asm()
    t(*q_mfmas(15))
    for b in range(6):
        for sg, f in ((1, KB), (0, QB), (2, VB)):
            t(cvt(f(b), ACC(b,sg), ACC(b,sg)+1), cvt(f(b)+1, ACC(b,sg)+2, ACC(b,sg)+3))
    for b in range(6):
        t(f"v_mfma_f32_16x16x16_bf16 {vr(SC(b),4)}, {vr(KB(b),2)}, {vr(QB(b),2)}, {vr(MC,4)}")
        if b: t(f"v_mfma_f32_16x16x16_bf16 {vr(SP(b),4)}, {vr(KB(b-1),2)}, {vr(QB(b),2)}, {vr(MP,4)}")
    for b in range(6):
        if b:
            for r in range(4): t(f"v_max_f32 v{SC(b)+r}, v{SC(b)+r}, v{SP(b)+r}")
        t(f"v_max3_f32 v{MX(b)}, v{SC(b)}, v{SC(b)+1}, v{SC(b)+2}", f"v_max_f32 v{MX(b)}, v{MX(b)}, v{SC(b)+3}")
    for x, y in [(0, 1), (2, 3), (4, 5)]:
        t(f"v_permlane32_swap_b32 v{MX(x)}, v{MX(y)}", f"v_max_f32 v{MX(x)}, v{MX(x)}, v{MX(y)}", f"v_mov_b32 v{MX(y)}, v{MX(x)}",
          f"v_permlane16_swap_b32 v{MX(x)}, v{MX(y)}", f"v_max_f32 v{MX(x)}, v{MX(x)}, v{MX(y)}", f"v_mul_f32 v{MX(x)}, s94, v{MX(x)}",
          f"v_mov_b32 v{MX(y)}, v{MX(x)}", f"v_permlane32_swap_b32 v{MX(x)}, v{MX(y)}")
    for b in range(6):
        if o.get("pk", 3) & 1:
            for r in (0, 2): t(f"v_pk_fma_f32 {vr(SC(b)+r,2)}, {vr(SC(b)+r,2)}, s[94:95], {vr(MX(b),2)} op_sel_hi:[1,1,0] neg_lo:[0,0,1] neg_hi:[0,0,1]")
        else:
            for r in range(4): t(f"v_fma_f32 v{SC(b)+r}, v{SC(b)+r}, s94, -v{MX(b)}")
        for r in range(4): t(f"v_exp_f32 v{SC(b)+r}, v{SC(b)+r}")
        if b == 0:
            t(cvt(PP(0), SC(0), SC(0)+1), cvt(PP(0)+1, SC(0)+2, SC(0)+3), f"v_mov_b32 v{PP(0)+2}, 0", f"v_mov_b32 v{PP(0)+3}, 0")
        else:
            t(cvt(PP(b), SC(b), SC(b)+1), cvt(PP(b)+1, SC(b)+2, SC(b)+3))
            t(f"v_and_b32 v{PP(b)+2}, v{PP(b)}, v{SM}", f"v_and_b32 v{PP(b)+3}, v{PP(b)+1}, v{SM+1}")
            t(f"v_xor_b32 v{PP(b)}, v{PP(b)}, v{PP(b)+2}", f"v_xor_b32 v{PP(b)+1}, v{PP(b)+1}, v{PP(b)+3}")
        t(mfma16(SP(b), ONES, PP(b), "0"), mfma16(OO(b), VB(max(b-1, 0)), PP(b), "0"))
        t(f"v_rcp_f32 v{MX(b)}, v{SP(b)}")
        if o.get("pk", 3) & 2:
            for r in (0, 2): t(f"v_pk_mul_f32 {vr(OO(b)+r,2)}, {vr(OO(b)+r,2)}, {vr(MX(b),2)} op_sel_hi:[1,0]")
        else:
            for r in range(4): t(f"v_mul_f32 v{OO(b)+r}, v{OO(b)+r}, v{MX(b)}")
        t(cvt(QB(b), OO(b), OO(b)+1), cvt(QB(b)+1, OO(b)+2, OO(b)+3))
        t(f"ds_write_b64 v176, {vr(QB(b),2)} offset:{L_STG + b*2048}")
    kernel.att = list(t.L)
    a(*schedule(t.L))
    if o.get("verbose"): print("attention est cycles", schedule.last_cycles)
    stamp(12)
    a("s_waitcnt lgkmcnt(0)", "s_barrier")
    stamp(13)
    for j in range(3): a(f"ds_read_b128 {vr(28+4*j,4)}, v177 offset:{L_STG + j*1024}")
    for j in range(3):
        a(f"s_waitcnt lgkmcnt({2-j})", f"buffer_store_dwordx4 {vr(28+4*j,4)}, v{178+j}, {sr(R_WS,4)}, 0 offen{SC1}")
    a("s_branch K_P2C")

    a("K_SPEC:")
    s_ids()
    a("s_lshl_b32 s77, s3, 12", "s_add_u32 s77, s77, 65536")
    a("v_add_u32 v13, s77, v11", "v_add_u32 v14, s77, v12")
    COS, SIN, NCOS = 160, 168, 176
    a("v_cvt_f32_u32 v22, v20", "v_cvt_f32_u32 v23, v21", "v_mul_f32 v23, 4.0, v23")
    for tt in range(2):
        if tt: a("v_add_f32 v22, 0x41800000, v22")
        a("v_mul_f32 v24, 0x3d000000, v22", "v_mul_f32 v26, v24, v23")
        a("v_add_f32 v27, v24, v26", "v_fma_f32 v28, v24, 2.0, v26", "v_fma_f32 v29, v24, 2.0, v27", "v_mul_f32 v25, 0.5, v22")
        for j in range(4): a(f"v_add_f32 v{30+j}, v25, v{26+j}")
        for j in range(8): a(f"v_sin_f32 v{34+j}, v{26+j}", f"v_cos_f32 v{26+j}, v{26+j}")
        for i in range(4):
            a(cvt(COS+4*tt+i, 26+2*i, 27+2*i), cvt(SIN+4*tt+i, 34+2*i, 35+2*i), f"v_xor_b32 v{NCOS+4*tt+i}, 0x80008000, v{COS+4*tt+i}")
    a(f"s_mul_i32 s76, s8, {VP}", "s_lshl_b32 s77, s10, 4", "s_add_u32 s76, s76, s77", f"s_add_u32 s76, s76, {WS_V}")
    a(f"v_mul_u32_u24 v252, {4*16*VP}, v21", "v_lshl_add_u32 v252, v20, 4, v252", "v_add_u32 v252, s76, v252")
    a(f"v_mul_u32_u24 v253, {16*VP}, v1", "s_add_u32 s76, s76, 4096", "v_add_u32 v253, s76, v253")
    XA = lambda s, mt: 16 + 32*(s % 2) + 4*mt
    DB = lambda s, p: 80 + 8*(s % 2) + 4*p
    ACC = lambda mt, p: 96 + 8*mt + 4*p
    def s_reads(s):
        c, ks = s // 2, s % 2; st = slot(c)
        D = [[f"ds_read_b128 {vr(DB(s,p),4)}, v{13+ks} offset:{st*16384 + p*2048}"] for p in range(2)]
        X = [[f"ds_read_b128 {vr(XA(s,mt),4)}, v{11+ks} offset:{st*16384 + mt*2048}"] for mt in range(8)]
        return D[:1] + X[:1] + D[1:] + X[1:]
    def s_mfmas(s):
        return [mfma16(ACC(mt,p), XA(s,mt), DB(s,p), "0" if s == 0 else ACC(mt,p)) for mt in range(8) for p in range(2)]
    mainloop(s_reads, s_mfmas)
    BA = lambda q: 16 + 8*q
    BB = lambda q: 20 + 8*q
    t = Asm(); t(*s_mfmas(15))
    for q in range(4):
        for p, f in ((0, BA), (1, BB)):
            for hf in range(2):
                t(cvt(f(q)+2*hf, ACC(2*q+hf,p), ACC(2*q+hf,p)+1), cvt(f(q)+2*hf+1, ACC(2*q+hf,p)+2, ACC(2*q+hf,p)+3))
    a(*schedule(t.L))
    a("s_cmp_lg_u32 s10, 0", "s_cbranch_scc1 K_NONYQ")
    NA, ND = 48, 52
    for i in range(4): a(f"v_mov_b32 v{NA+i}, v{BB(0)+i}")
    for q in range(1, 4):
        for i in range(4): a(f"v_mov_b32_dpp v{NA+i}, v{BB(q)+i} row_shr:{q} row_mask:0xf bank_mask:0xf")
    for tt in range(2):
        a(mfma16(ND+8*tt, NA, COS+4*tt, "0"), mfma16(ND+8*tt+4, NA, SIN+4*tt, "0"))
    a("s_mov_b32 exec_lo, 0x00010001", "s_mov_b32 exec_hi, 0x00010001")
    for q in range(4):
        for i in range(4): a(f"v_mov_b32 v{BB(q)+i}, 0")
    a("s_mov_b32 exec_lo, 0xffff", "s_mov_b32 exec_hi, 0")
    for tt in range(2):
        for i in range(4): a(cvt(184+4*tt+i, ND+8*tt+2*i, ND+8*tt+2*i+1))
        a(f"s_mov_b32 s76, {tt*16*16*VP}", f"buffer_store_dwordx4 {vr(184+4*tt,4)}, v253, {sr(R_WS,4)}, s76 offen{SC1}")
    a("s_mov_b64 exec, -1", "s_nop 1")
    a("K_NONYQ:", "s_nop 1")
    t = Asm()
    for tt in range(2):
        for q in range(4):
            t(mfma16(ACC(2*q+tt,0), COS+4*tt, BA(q), "0"), mfma16(ACC(2*q+tt,1), SIN+4*tt, BA(q), "0"))
            t(mfma16(ACC(2*q+tt,0), SIN+4*tt, BB(q), ACC(2*q+tt,0)), mfma16(ACC(2*q+tt,1), NCOS+4*tt, BB(q), ACC(2*q+tt,1)))
        for r in range(4):
            d = 48 + 4*(4*tt+r)
            t(cvt(d, ACC(tt,0)+r, ACC(2+tt,0)+r), cvt(d+1, ACC(4+tt,0)+r, ACC(6+tt,0)+r),
              cvt(d+2, ACC(tt,1)+r, ACC(2+tt,1)+r), cvt(d+3, ACC(4+tt,1)+r, ACC(6+tt,1)+r))
            t(f"s_mov_b32 s{76+r%2}, {(16*tt+r)*16*VP}", f"buffer_store_dwordx4 {vr(d,4)}, v252, {sr(R_WS,4)}, s{76+r%2} offen{SC1}")
    a(*schedule(t.L))

    a("K_P2C:")
    stamp(4)
    VF = lambda ks: 48 + 4*ks
    AA, AB = 16, 32
    WO = lambda kk: 80 + 4*kk
    OF = lambda c, ks: 48 + 16*(c % 2) + 4*ks
    OB = lambda ks: 3 if ks == 0 else 208 + ks
    for ks in range(1, 4): a(f"v_xor_b32 v{OB(ks)}, {32*ks}, v3")
    a("s_waitcnt vmcnt(0)")
    stamp(5)
    a("s_barrier")
    for c in range(8):
        for ks in range(4):
            for sub in range(2): a(f"ds_read_b64_tr_b16 {vr(WO(4*c+ks)+2*sub,2)}, v8 offset:{c*8192 + (16*ks+4*sub)*128}")
    a(f"s_mov_b32 s76, {WS_G}", "s_waitcnt lgkmcnt(0)")
    stamp(6)
    a("s_barrier")
    stamp(7)
    a(f"buffer_load_dword v212, v2, {sr(R_WS,4)}, s76 offen{SC1}")
    ordr = lambda c: [f"ds_read_b128 {vr(OF(c,ks),4)}, v{OB(ks)} offset:{L_O + c*8192}" for ks in range(4)]
    omf = lambda c: [mfma32(AB, WO(4*c+ks), OF(c,ks), "0" if (c == 0 and ks == 0) else AB) for ks in range(4)]
    vrd = [f"ds_read_b128 {vr(VF(ks),4)}, v4 offset:{ks*2048}" for ks in range(8)]
    if o.get("vfirst", 0):
        a("s_barrier"); stamp(8)
        a(*vrd)
        for ks in range(8): a(f"s_waitcnt lgkmcnt({7-ks})", mfma32(AA, VF(ks), WF(ks), "0" if ks == 0 else AA))
        a("s_barrier", *ordr(0))
        for c in range(1, 8):
            a("s_barrier")
            if c == 7: stamp(9)
            a(*ordr(c), "s_waitcnt lgkmcnt(4)")
            fill = []
            if c == 4: fill = [["s_waitcnt vmcnt(0)", "v_sub_f32 v214, 1.0, v212", f"v_add_u32 v216, {8*32768}, v7"]]
            if c in (5, 6): fill = [[f"v_mul_f32 v{AA+i}, v{AA+i}, v212" for i in range(8*(c-5)+2*k, 8*(c-5)+2*k+2)] for k in range(4)]
            a(*interleave(omf(c-1), fill))
        a("s_waitcnt lgkmcnt(0)", *omf(7))
        AA, AB, GR = AB, AA, 214
    else:
        GR = 212
        a("s_barrier"); stamp(8)
        a(*ordr(0))
        for c in range(1, 8):
            a("s_barrier")
            a(*ordr(c), "s_waitcnt lgkmcnt(4)")
            a(*omf(c-1))
        vrd = [f"ds_read_b128 {vr(VF(ks),4)}, v4 offset:{ks*2048}" for ks in range(8)]
        a("s_waitcnt lgkmcnt(0)", *omf(7)[:2])
        a("s_barrier"); stamp(9)
        a(*vrd[:4], *omf(7)[2:], *vrd[4:], "s_waitcnt vmcnt(0)", "v_sub_f32 v214, 1.0, v212", f"v_add_u32 v216, {8*32768}, v7")
        for ks in range(8):
            a(f"s_waitcnt lgkmcnt({7-ks})", mfma32(AA, VF(ks), WF(ks), "0" if ks == 0 else AA))
            if ks >= 4: a(*[f"v_mul_f32 v{AB+i}, v{AB+i}, v214" for i in range(4*ks-16, 4*ks-12)])
    for i in range(0, 8, 2):
        for k in (i, i+1): a(f"v_pk_fma_f32 {vr(AA+2*k,2)}, {vr(AA+2*k,2)}, {vr(GR,2)}, {vr(AB+2*k,2)} op_sel_hi:[1,0,1]")
        if i: a(f"v_xor_b32 v217, {8*i}, v5")
        a(cvt(80+i, AA+2*i, AA+2*i+1), cvt(81+i, AA+2*i+2, AA+2*i+3))
        a(f"ds_write_b64 v{217 if i else 5}, {vr(80+i,2)}")
    a("s_waitcnt lgkmcnt(0)", "s_barrier")
    for j in range(2): a(f"ds_read_b128 {vr(88+4*j,4)}, v6 offset:{j*1024}")
    osc = " sc1" if o.get("outsc1") else (" nt" if o.get("outnt") else "")
    for j in range(2): a(f"s_waitcnt lgkmcnt({1-j})", f"buffer_store_dwordx4 {vr(88+4*j,4)}, v{216 if j else 7}, {sr(R_OUT,4)}, 0 offen{osc}")
    stamp(10)
    stamps_out(11)
    a("K_END:", "s_endpgm")
    return a.L

def k3probe(o):
    a = Asm(); p = o["probe"]
    a("s_cmp_lg_u32 s2, 0", "s_cbranch_scc1 K3_END")
    a("s_load_dwordx2 s[38:39], s[0:1], 88", "s_waitcnt lgkmcnt(0)")
    srd(a, R_WS, P_WS, WS_SIZE)
    a("v_and_b32 v1, 63, v0", "v_lshlrev_b32 v2, 2, v1", "v_bfe_u32 v3, v1, 0, 2", "v_add_u32 v2, v2, v3", "v_lshlrev_b32 v1, 10, v2", "v_mov_b32 v2, 0")
    a(f"s_mov_b32 s4, {WS_ST + 128*o.get('pwave', 0)}")
    if p == 1:
        a(f"buffer_load_dword v3, v2, {sr(R_WS,4)}, s4 offen offset:120", f"buffer_load_dword v4, v1, {sr(R_WS,4)}, s4 offen offset:124")
    else:
        a(f"buffer_load_dword v3, v1, {sr(R_WS,4)}, s4 offen offset:{4*o.get('pb', 0)}", f"buffer_load_dword v4, v1, {sr(R_WS,4)}, s4 offen offset:{4*o.get('pa', 0)}")
    a("s_waitcnt vmcnt(0)", "v_sub_u32 v4, v4, v3")
    op = "v_max_i32_dpp"
    for sh in (1, 2, 4, 8): a(f"{op} v4, v4, v4 row_shr:{sh} row_mask:0xf bank_mask:0xf")
    a(f"{op} v4, v4, v4 row_bcast:15 row_mask:0xa bank_mask:0xf", f"{op} v4, v4, v4 row_bcast:31 row_mask:0xc bank_mask:0xf")
    a("s_nop 1", "v_readlane_b32 s6, v4, 63", "s_nop 3", "s_max_i32 s6, s6, 0", "s_min_i32 s6, s6, 30000", f"s_mul_i32 s6, s6, {10 if p == 1 else (1 if p == 2 else 0)}")
    a("s_memrealtime s[8:9]", "s_waitcnt lgkmcnt(0)", "K3_LOOP:", "s_memrealtime s[10:11]", "s_waitcnt lgkmcnt(0)", "s_sub_u32 s10, s10, s8", "s_cmp_lt_u32 s10, s6", "s_cbranch_scc1 K3_LOOP")
    a("K3_END:", "s_endpgm")
    return a.L

def kd(name, vg):
    return f""".amdhsa_kernel {name}
  .amdhsa_next_free_vgpr {vg}
  .amdhsa_next_free_sgpr 102
  .amdhsa_accum_offset {vg}
  .amdhsa_group_segment_fixed_size 0
  .amdhsa_kernarg_size 96
  .amdhsa_user_sgpr_count 2
  .amdhsa_user_sgpr_kernarg_segment_ptr 1
  .amdhsa_system_sgpr_workgroup_id_x 1
.end_amdhsa_kernel
"""

def build(o):
    hdr = [l for l in open(f"cdna_kernels/{NAME}.s.ref").read().split("\n") if l.startswith(";") and "@launch" not in l and "Override" not in l and "grid=ceil" not in l]
    ks = [(KN, kernel(o))]
    if o.get("probe"):
        out = hdr + [f"; @launch kernel={KN} grid=(256,1,1) block=(512,1,1) lds={LDS}", "; @launch kernel=k3_kernel grid=(256,1,1) block=(256,1,1) lds=0"]
        ks.append(("k3_kernel", k3probe(o)))
    elif o.get("aslist"): out = hdr + [f"; @launch kernel={KN} grid=(256,1,1) block=(512,1,1) lds={LDS}"]
    else: out = hdr + [f"; @launch grid=(256,1,1) block=(512,1,1) lds={LDS}"]
    out += ['.amdgcn_target "amdgcn-amd-amdhsa--gfx950"', ".text"]
    for n, L in ks:
        out += [f".globl {n}", ".p2align 8", f".type {n},@function", f"{n}:"]
        out += ["    " + x if not x.endswith(":") else x for x in fix_hazards(L, verbose=o.get("verbose"))]
        if n == KN: out.append("CODE_END:")
    out += ['.section .rodata,"a"']
    for n, L in ks: out += [".p2align 6", kd(n, 256)]
    return "\n".join(out) + "\n"

if __name__ == "__main__":
    o = {}
    path = f"cdna_kernels/{NAME}.s"
    for x in sys.argv[1:]:
        if "=" in x:
            k, v = x.split("="); o[k] = int(v)
        else: path = x
    o["verbose"] = 1
    open(path, "w").write(build(o))
    print("wrote", path)
```
